```python
import torch

def _softmax(x, axis=-1):
    return torch.softmax(x, dim=axis)
def _gelu(x):
    return torch.nn.functional.gelu(x, approximate="tanh")
def _silu(x):
    return torch.nn.functional.silu(x)
def _sigmoid(x):
    return torch.sigmoid(x)
def _layernorm(x, axis=-1, eps=1e-5):
    m = x.mean(dim=axis, keepdim=True)
    v = x.var(dim=axis, keepdim=True, unbiased=False)
    return (x - m) / torch.sqrt(v + eps)
def _scatter_add(tgt, idx, src, axis=0):
    return tgt.clone().index_add_(axis, idx, src)
def _segment_sum(src, seg, n):
    out = torch.zeros((n,) + src.shape[1:], dtype=src.dtype)
    return out.index_add_(0, seg, src)
def _pad(x, pw):
    flat = tuple(v for pair in reversed(pw) for v in pair)
    return torch.nn.functional.pad(x, flat)

kernel_name = 'parallel_sum__ssm_conv_h3__dense_activation_silu__prompt'

def setup_inputs():

    _w = (lambda a: (lambda t: t.to(torch.bfloat16) if t.is_floating_point() else t)(torch.as_tensor(a)))
    def _A_setup():
        B, S, D = 1, 2048, 640
        ks = 4
        return {
            "q": _w((lambda *s: torch.randn(*s, dtype=torch.bfloat16) * 0.05)(B, S, D)),
            "k": _w((lambda *s: torch.randn(*s, dtype=torch.bfloat16) * 0.2)(B, S, D)),
            "v": _w((lambda *s: torch.randn(*s, dtype=torch.bfloat16) * 0.2)(B, S, D)),
            "shift_k": _w((lambda *s: torch.randn(*s, dtype=torch.bfloat16) * 0.2)(D, ks) * 0.5),
            "ssm_k": _w((lambda *s: torch.randn(*s, dtype=torch.bfloat16) * 0.4)(D, S) * (1.0 / S ** 0.5)),
            "ssm_D": _w((lambda *s: torch.randn(*s, dtype=torch.bfloat16) * 0.2)(D)),
        }
    _A_in = _A_setup()

    def _B_setup():
        B, S, D, F = 1, 2048, 640, 1728
        return {
            "x": _w((lambda *s: torch.randn(*s, dtype=torch.bfloat16) * 0.05)(B, S, D)),
            "w1": _w((lambda *s: torch.randn(*s, dtype=torch.bfloat16) * 0.8)(D, F) * (D ** -0.5)),
            "w2": _w((lambda *s: torch.randn(*s, dtype=torch.bfloat16) * 0.1)(F, D) * (F ** -0.5)),
        }
    _B_in = _B_setup()

    return {
        "A_q": _A_in["q"],
        "A_k": _A_in["k"],
        "A_v": _A_in["v"],
        "A_shift_k": _A_in["shift_k"],
        "A_ssm_k": _A_in["ssm_k"],
        "A_ssm_D": _A_in["ssm_D"],
        "B_x": _B_in["x"],
        "B_w1": _B_in["w1"],
        "B_w2": _B_in["w2"],
    }

def reference(A_q, A_k, A_v, A_shift_k, A_ssm_k, A_ssm_D, B_x, B_w1, B_w2):
    def _A_ref(q, k, v, shift_k, ssm_k, ssm_D):
        B, S, D = q.shape
        ks = shift_k.shape[-1]
        k_pad = _pad(k, ((0, 0), (ks - 1, 0), (0, 0)))
        k_shift = torch.zeros_like(k)
        for t in range(ks):
            k_shift = k_shift + k_pad[:, t:t + S, :] * shift_k[:, ks - 1 - t][None, None, :]
        kv = k_shift * v
        L = 2 * S
        kv_pad = _pad(kv, ((0, 0), (0, S), (0, 0)))
        kf_pad = _pad(ssm_k, ((0, 0), (0, S)))
        kv_f = (lambda x, axes=(-2,-1): torch.fft.rfft2(x.float(), dim=axes))(kv_pad[:, None, :, :], axes=(1, 2))
        kf_f = (lambda x, axes=(-2,-1): torch.fft.rfft2(x.float(), dim=axes))(kf_pad[:, None, :], axes=(1, 2))
        kf_f = (lambda x, *d: x.permute(*d))(kf_f, 1, 2, 0)
        y_f = kv_f * kf_f[None, :, :, :]
        y = (lambda x, s, axes=(-2,-1): torch.fft.irfft2(x, s=s, dim=axes).to(torch.bfloat16))(y_f, (1, L), axes=(1, 2))[:, 0, :S, :]
        y = y + kv * ssm_D[None, None, :]
        return q * y

    def _B_ref(x, w1, w2):
        h = torch.einsum("bsd,df->bsf", x, w1)
        h = _silu(h)
        out = torch.einsum("bsf,fd->bsd", h, w2)
        return out

    x = A_q
    xn = _layernorm(x, axis=-1)
    return x + _A_ref(xn, A_k, A_v, A_shift_k, A_ssm_k, A_ssm_D) + _B_ref(xn, B_w1, B_w2)
```

```python
NAME = "parallel_sum__ssm_conv_h3__dense_activation_silu__prompt"

class Asm:
    def __init__(self):
        self.lines = []
        self.nlab = 0
    def __call__(self, s=""):
        for l in s.split("\n"):
            self.lines.append(l)
    def lab(self, base="L"):
        self.nlab += 1
        return f"{base}_{self.nlab}"
    def text(self):
        return "\n".join(self.lines) + "\n"

def header(launch_lines):
    s = "; generated kernel\n"
    for l in launch_lines:
        s += l + "\n"
    s += '.amdgcn_target "amdgcn-amd-amdhsa--gfx950"\n.text\n'
    return s

def kernel_begin(name):
    return f".globl {name}\n.p2align 8\n.type {name},@function\n{name}:\n"

def kernel_desc(name, vgpr=256, sgpr=102, accum=256):
    return f""".amdhsa_kernel {name}
  .amdhsa_next_free_vgpr {vgpr}
  .amdhsa_next_free_sgpr {sgpr}
  .amdhsa_accum_offset {accum}
  .amdhsa_group_segment_fixed_size 0
  .amdhsa_kernarg_size 96
  .amdhsa_user_sgpr_count 2
  .amdhsa_user_sgpr_kernarg_segment_ptr 1
  .amdhsa_system_sgpr_workgroup_id_x 1
.end_amdhsa_kernel
"""

def rodata():
    return '.section .rodata,"a"\n.p2align 6\n'
```

```python
import sys
from asmlib import *

S, D, F = 2048, 640, 1728
WS_KVT, WS_YT, WS_ST, WS_FL, WS_H, WS_END = 0, 0x280000, 0x500000, 0x508000, 0x600000, 0xD00000
SRD = dict(X=(4,0,S*D*2), K=(8,8,S*D*2), V=(12,16,S*D*2), SH=(16,24,D*8), SSM=(20,32,S*D*2), DD=(24,40,D*2),
           W1=(28,56,D*F*2), W2=(32,64,D*F*2), OUT=(36,72,S*D*2), DBG=(40,80,256), WS=(44,88,WS_END))
def srd(n): b = SRD[n][0]; return f"s[{b}:{b+3}]"
sRB, sG, sW, sCG, sMEM, sRT = "s48", "s49", "s50", "s51", "s52", "s53"
def vr(b, n=1): return f"v{b}" if n == 1 else f"v[{b}:{b+n-1}]"
def ar(b, n=1): return f"a{b}" if n == 1 else f"a[{b}:{b+n-1}]"
ST = "sc1"
LD = "sc1"

def prologue(a, use, endlab):
    a(f"s_cmp_ge_u32 s2, 256\ns_cbranch_scc1 {endlab}")
    for n in use:
        b, off, sz = SRD[n]
        a(f"s_load_dwordx2 s[{b}:{b+1}], s[0:1], {off}")
    for n in use:
        b, off, sz = SRD[n]
        a(f"s_mov_b32 s{b+2}, {sz}\ns_mov_b32 s{b+3}, 0x20000")
    a(f"""v_lshrrev_b32 v1, 6, v0
s_and_b32 {sRB}, s2, 3
s_lshl_b32 {sRB}, {sRB}, 2
s_lshr_b32 s3, s2, 6
s_add_u32 {sRB}, {sRB}, s3
v_readfirstlane_b32 {sW}, v1
s_lshl_b32 {sG}, s2, 1
s_and_b32 {sG}, {sG}, 8
s_bfe_u32 s3, s2, 0x30003
s_add_u32 {sG}, {sG}, s3
s_lshr_b32 {sCG}, {sG}, 1
s_and_b32 {sMEM}, {sG}, 1
s_lshl_b32 {sRT}, {sRB}, 1
s_add_u32 {sRT}, {sRT}, {sMEM}
v_and_b32 v1, 63, v0""")

def s0_kv(a):
    vA, vB, vS, vO = 2, 3, 4, 5
    KR, VR, WR = 8, 30, 46
    KF, WF, T = 56, 100, 116
    a(f"""v_cmp_gt_u32 vcc, 160, v0
s_and_saveexec_b64 s[60:61], vcc
v_and_b32 v6, 7, v0
v_lshrrev_b32 v7, 3, v0
s_lshl_b32 s54, {sRT}, 6
v_lshl_add_u32 v6, v6, 3, s54
s_mul_i32 s55, {sCG}, 20
v_add_u32 v7, s55, v7
v_mul_u32_u24 v{vA}, 1280, v6
v_lshl_add_u32 v{vA}, v7, 3, v{vA}
v_subrev_u32 v{vB}, 3840, v{vA}
v_cmp_eq_u32 vcc, 0, v6
v_mov_b32 v{vS}, 0x80000000
v_lshlrev_b32 v{vO}, 14, v7
v_cndmask_b32 v{vB}, v{vB}, v{vS}, vcc
v_lshlrev_b32 v{vS}, 5, v7
v_lshlrev_b32 v6, 1, v6
v_sub_u32 v6, {WS_KVT + 4080}, v6
v_add_u32 v{vO}, v{vO}, v6
s_mov_b32 s56, 5120
s_waitcnt lgkmcnt(0)""")
    a(f"buffer_load_dwordx4 {vr(WR,4)}, v{vS}, {srd('SH')}, 0 offen")
    a(f"buffer_load_dwordx4 {vr(WR+4,4)}, v{vS}, {srd('SH')}, 0 offen offset:16")
    for i in range(3):
        a(f"buffer_load_dwordx2 {vr(KR+2*i,2)}, v{vB}, {srd('K')}, 0 offen offset:{1280*i}")
    for i in range(8):
        so = "0" if i < 4 else "s56"
        a(f"buffer_load_dwordx2 {vr(KR+6+2*i,2)}, v{vA}, {srd('K')}, {so} offen offset:{1280*(i&3)}")
    for i in range(8):
        so = "0" if i < 4 else "s56"
        a(f"buffer_load_dwordx2 {vr(VR+2*i,2)}, v{vA}, {srd('V')}, {so} offen offset:{1280*(i&3)}")
    def lo(d, s): a(f"v_lshlrev_b32 v{d}, 16, v{s}")
    def hi(d, s): a(f"v_and_b32 v{d}, 0xffff0000, v{s}")
    a("s_waitcnt vmcnt(19)")
    for c in range(4):
        for jj in range(4):
            (hi if jj & 1 else lo)(WF + jj*4 + c, WR + 2*c + (jj >> 1))
    a("s_waitcnt vmcnt(8)")
    for i in range(11):
        for p in range(2):
            lo(KF + 4*i + 2*p, KR + 2*i + p); hi(KF + 4*i + 2*p + 1, KR + 2*i + p)
    a("s_waitcnt vmcnt(0)")
    for i in range(8):
        for p in range(2):
            r = T + 4*i + 2*p; tv = T + 32 + 2*p
            lo(tv, VR + 2*i + p); hi(tv + 1, VR + 2*i + p)
            a(f"v_pk_mul_f32 {vr(r,2)}, {vr(KF+4*(i+3)+2*p,2)}, {vr(WF+2*p,2)}")
            for jj in range(1, 4):
                a(f"v_pk_fma_f32 {vr(r,2)}, {vr(KF+4*(i+3-jj)+2*p,2)}, {vr(WF+4*jj+2*p,2)}, {vr(r,2)}")
            a(f"v_pk_mul_f32 {vr(r,2)}, {vr(r,2)}, {vr(tv,2)}")
    O = 8
    for c in range(4):
        for n in range(4):
            a(f"v_cvt_pk_bf16_f32 v{O+4*c+n}, v{T+4*(7-2*n)+c}, v{T+4*(6-2*n)+c}")
        a(f"s_mov_b32 s57, {4096*c}")
        a(f"buffer_store_dwordx4 {vr(O+4*c,4)}, v{vO}, {srd('WS')}, s57 offen {ST}")
    a("s_mov_b64 exec, s[60:61]")

def dpp_sum8(a, r):
    for m in ("quad_perm:[1,0,3,2]", "quad_perm:[2,3,0,1]", "row_half_mirror"):
        a(f"s_nop 1\nv_add_f32_dpp v{r}, v{r}, v{r} {m} row_mask:0xf bank_mask:0xf")

def s0_stats(a):
    XR, XF = 8, 48
    a(f"""v_lshrrev_b32 v2, 3, v1
s_lshl_b32 s54, {sRB}, 7
s_lshl_b32 s55, {sG}, 3
s_add_u32 s54, s54, s55
v_add_u32 v2, s54, v2
v_and_b32 v3, 7, v1
v_mul_u32_u24 v4, 1280, v2
v_lshl_add_u32 v4, v3, 4, v4
v_lshlrev_b32 v2, 3, v2
v_add_u32 v2, {WS_ST}, v2
s_waitcnt lgkmcnt(0)""")
    for i in range(10):
        a(f"buffer_load_dwordx4 {vr(XR+4*i,4)}, v4, {srd('X')}, 0 offen offset:{128*i}")
    a("v_mov_b32 v6, 0\nv_mov_b32 v7, 0")
    for i in range(10):
        a(f"s_waitcnt vmcnt({9-i})")
        for j in range(4):
            d = XF + 8*i + 2*j
            a(f"v_lshlrev_b32 v{d}, 16, v{XR+4*i+j}\nv_and_b32 v{d+1}, 0xffff0000, v{XR+4*i+j}")
            a(f"v_pk_add_f32 v[6:7], v[6:7], {vr(d,2)}")
    a("v_add_f32 v6, v6, v7")
    dpp_sum8(a, 6)
    a(f"v_mul_f32 v6, {hex(f32bits(1.0/640))}, v6")
    a("v_mov_b32 v8, 0\nv_mov_b32 v9, 0")
    for i in range(40):
        d = XF + 2*i
        a(f"v_pk_add_f32 {vr(d,2)}, {vr(d,2)}, v[6:7] op_sel_hi:[1,0] neg_lo:[0,1] neg_hi:[0,1]")
        a(f"v_pk_fma_f32 v[8:9], {vr(d,2)}, {vr(d,2)}, v[8:9]")
    a("v_add_f32 v8, v8, v9")
    dpp_sum8(a, 8)
    a(f"""v_mul_f32 v8, {hex(f32bits(1.0/640))}, v8
v_cvt_pk_bf16_f32 v8, v8, v6
v_and_b32 v6, 0xffff0000, v8
v_lshlrev_b32 v8, 16, v8
v_add_f32 v8, {hex(f32bits(1e-5))}, v8
v_cvt_pk_bf16_f32 v8, v8, v8
v_lshlrev_b32 v8, 16, v8
v_sqrt_f32 v8, v8
s_nop 0
v_cvt_pk_bf16_f32 v8, v8, v8
v_lshlrev_b32 v8, 16, v8
v_rcp_f32 v7, v8
v_cmp_eq_u32 vcc, 0, v3
s_and_saveexec_b64 s[60:61], vcc
buffer_store_dwordx2 v[6:7], v2, {srd('WS')}, 0 offen {ST}
s_mov_b64 exec, s[60:61]""")

import struct
def f32bits(x): return struct.unpack("<I", struct.pack("<f", x))[0]

def k0(a, name):
    a(kernel_begin(name))
    prologue(a, ["X","K","V","SH","WS"], "L0_end")
    a(f"s_cmp_eq_u32 {sW}, 3\ns_cbranch_scc1 L0_stats")
    s0_kv(a)
    a("s_branch L0_end\nL0_stats:")
    s0_stats(a)
    a("L0_end:\ns_endpgm")

G1_SLOT = 28672
def gemm1(a):
    vX, vD, vA = 8, 16, 24
    ACC, CS, AF, ONE = 32, 88, 116, 144
    XB = 0
    sGX, sGW, sM0 = 64, 70, 76
    a(f"""v_and_b32 v2, 15, v1
v_lshrrev_b32 v3, 4, v1
s_lshl_b32 s54, {sRB}, 7
s_lshl_b32 s55, {sW}, 5
s_add_u32 s54, s54, s55
v_add_u32 v4, s54, v2
v_mul_u32_u24 v4, 1280, v4
v_lshl_add_u32 v4, v3, 4, v4
v_lshrrev_b32 v5, 2, v2
v_lshl_add_u32 v5, v3, 2, v5
v_mul_u32_u24 v5, 224, v5
v_and_b32 v6, 3, v1
v_lshl_add_u32 v5, v6, 3, v5""")
    for u in range(4):
        a(f"""s_add_u32 s54, {sW}, {u}
s_and_b32 s54, s54, 3
s_lshl_b32 s55, s54, 6
s_mul_i32 s54, s54, 7168
v_add_u32 v{vX+2*u}, s55, v4
v_add_u32 v{vA+u}, s54, v5
v_add_u32 v{vX+2*u+1}, 20480, v{vX+2*u}""")
    for c in range(448): assert (c*4682) >> 16 == c // 14
    a(f"""s_mul_i32 s54, {sW}, {32*3456}
s_mul_i32 s55, {sG}, 224
s_add_u32 s54, s54, s55""")
    for i in range(7):
        a(f"""v_add_u32 v2, {64*i}, v1
v_mul_u32_u24 v3, 4682, v2
v_lshrrev_b32 v3, 16, v3
v_mul_u32_u24 v4, 14, v3
v_sub_u32 v2, v2, v4
v_bfe_u32 v4, v3, 2, 2
v_and_b32 v5, 3, v3
v_lshl_add_u32 v4, v4, 3, v5
v_lshrrev_b32 v5, 4, v3
v_lshl_add_u32 v4, v5, 2, v4
v_mul_u32_u24 v4, 3456, v4
v_lshl_add_u32 v4, v2, 4, v4
s_sub_u32 s55, s54, {1024*(i&3)}
v_add_u32 v{vD+i}, s55, v4""")
    a(f"""s_add_u32 s54, {sRB}, {sG}
s_mul_i32 s55, s54, 52
s_lshr_b32 s55, s55, 8
s_mul_i32 s55, s55, 5
s_sub_u32 s54, s54, s55""")
    for c in range(31): assert (c*52) >> 8 == c // 5
    for n in range(5):
        a(f"""s_lshl_b32 s{sGX+n}, s54, 8
s_mul_i32 s{sGW+n}, s54, {128*3456}
s_add_u32 s54, s54, 1
s_cmp_eq_u32 s54, 5
s_cselect_b32 s54, 0, s54""")
    a(f"s_mul_i32 s{sM0}, {sW}, 7168")
    for i in range(4): a(f"v_mov_b32 v{ONE+i}, 0x3f803f80")
    a("s_waitcnt lgkmcnt(0)")
    def loads(n):
        r = []; slot = n % 3
        for i in range(7):
            if i in (0, 4):
                r.append(f"s_add_u32 m0, s{sM0}, {slot*G1_SLOT + 1024*i}")
                r.append(xload(n, i//4))
            r.append(f"buffer_load_dwordx4 v{vD+i}, {srd('W1')}, s{sGW+n} offen offset:{1024*(i&3)} lds")
        for j in range(2, 8): r.append(xload(n, j))
        return r
    def xload(n, j):
        return f"buffer_load_dwordx4 {ar(XB+32*(n%3)+4*j,4)}, v{vX+j}, {srd('X')}, s{sGX+n} offen"
    def rd(n, u, t, h):
        return f"ds_read_b64_tr_b16 {vr(AF+4*t+2*h,2)}, v{vA+u} offset:{(n%3)*G1_SLOT + t*32 + h*3584}"
    for n in range(3):
        a("\n".join(loads(n)))
    a("s_waitcnt vmcnt(30)")
    for t in range(7):
        a(rd(0,0,t,0)); a(rd(0,0,t,1))
    for n in range(5):
        pend = loads(n+2) if 1 <= n <= 2 else []
        for u in range(4):
            nxt = (n, u+1) if u < 3 else ((n+1, 0) if n < 4 else None)
            if u == 0: a("s_barrier")
            if u == 3 and n < 4:
                assert not pend
                a(f"s_waitcnt vmcnt({15 if n < 3 else 0})")
            for t in range(7):
                if t == 0: a("s_waitcnt lgkmcnt(6)")
                if t == 4: a(f"s_waitcnt lgkmcnt({8 if nxt else 0})")
                first = (n == 0 and u == 0)
                for rt in range(2):
                    c = vr(ACC + 28*rt + 4*t, 4)
                    a(f"v_mfma_f32_16x16x32_bf16 {c}, {vr(AF+4*t,4)}, {ar(XB+32*(n%3)+8*u+4*rt,4)}, {'0' if first else c}")
                    if rt == 0 and pend and t not in (0,): a(pend.pop(0))
                if u == 0:
                    c = vr(CS + 4*t, 4)
                    a(f"v_mfma_f32_16x16x32_bf16 {c}, {vr(AF+4*t,4)}, {vr(ONE,4)}, {'0' if n == 0 else c}")
                if nxt:
                    a(rd(nxt[0], nxt[1], t, 0)); a(rd(nxt[0], nxt[1], t, 1))
    STT = 8
    a(f"""v_and_b32 v2, 15, v1
v_lshrrev_b32 v3, 4, v1
s_lshl_b32 s54, {sRB}, 7
s_lshl_b32 s55, {sW}, 5
s_add_u32 s54, s54, s55
v_add_u32 v4, s54, v2
v_lshlrev_b32 v4, 3, v4
v_add_u32 v4, {WS_ST}, v4
buffer_load_dwordx2 v[8:9], v4, {srd('WS')}, 0 offen {LD}
buffer_load_dwordx2 v[10:11], v4, {srd('WS')}, 0 offen offset:128 {LD}
v_lshlrev_b32 v5, 4, v3
s_mul_i32 s54, {sW}, 448
v_add_u32 v6, s54, v5
v_cmp_eq_u32 vcc, 0, v2
s_barrier
s_and_saveexec_b64 s[60:61], vcc""")
    for t in range(7):
        a(f"ds_write_b128 v6, {vr(CS+4*t,4)} offset:{64*t}")
    a("s_mov_b64 exec, s[60:61]\ns_waitcnt lgkmcnt(0)\ns_barrier")
    TMP = 148
    for t in range(7):
        for w in range(4):
            d = CS + 4*t if w == 0 else TMP + 4*(w-1)
            a(f"ds_read_b128 {vr(d,4)}, v5 offset:{448*w + 64*t}")
        a("s_waitcnt lgkmcnt(0)")
        for w in range(1, 4):
            for h in range(2):
                a(f"v_pk_add_f32 {vr(CS+4*t+2*h,2)}, {vr(CS+4*t+2*h,2)}, {vr(TMP+4*(w-1)+2*h,2)}")
    a(f"""s_lshl_b32 s54, {sRB}, 3
s_lshl_b32 s55, {sW}, 1
s_add_u32 s54, s54, s55
s_mul_i32 s54, s54, 56
s_lshr_b32 s55, {sG}, 2
s_mul_i32 s55, s55, 14
s_add_u32 s54, s54, s55
s_and_b32 s55, {sG}, 3
s_mul_i32 s56, s55, 3
s_add_u32 s56, s56, s54
s_lshl_b32 s56, s56, 10
s_add_u32 s56, s56, {WS_H}
s_add_u32 s57, s56, {56*1024}
s_lshr_b32 s55, s55, 1
s_add_u32 s54, s54, s55
s_lshl_b32 s54, s54, 10
s_lshl_b32 s55, {sMEM}, 9
s_add_u32 s54, s54, s55
s_add_u32 s58, s54, {WS_H + 12*1024}
v_lshlrev_b32 v4, 4, v1
v_and_b32 v5, 1, v3
v_mul_u32_u24 v5, {56*1024}, v5
v_lshrrev_b32 v6, 1, v3
v_lshl_add_u32 v5, v6, 8, v5
v_lshl_add_u32 v5, v2, 4, v5
s_waitcnt vmcnt(0)
v_mul_f32 v12, {hex(f32bits(-1.4426950408889634))}, v9
v_mul_f32 v14, {hex(f32bits(-1.4426950408889634))}, v11""")
    OUT = 160
    def outreg(rt, t):
        return OUT + 12*rt + 2*t if t < 6 else OUT + 24 + 2*rt
    Z = 192
    for t in range(7):
        for rt in range(2):
            c = ACC + 28*rt + 4*t; st = STT + 2*rt; zz = Z + 4*rt
            for h in range(2):
                a(f"v_pk_fma_f32 {vr(c+2*h,2)}, {vr(CS+4*t+2*h,2)}, {vr(st,2)}, {vr(c+2*h,2)} op_sel_hi:[1,0,1] neg_lo:[0,1,0] neg_hi:[0,1,0]")
            for h in range(2):
                a(f"v_pk_mul_f32 {vr(zz+2*h,2)}, {vr(c+2*h,2)}, {vr(12+2*rt,2)} op_sel_hi:[1,0]")
            for i in range(4): a(f"v_exp_f32 v{zz+i}, v{zz+i}")
            for h in range(2):
                a(f"v_pk_mul_f32 {vr(c+2*h,2)}, {vr(c+2*h,2)}, {vr(st,2)} op_sel:[0,1] op_sel_hi:[1,1]")
            for h in range(2):
                a(f"v_pk_add_f32 {vr(zz+2*h,2)}, {vr(zz+2*h,2)}, 1.0 op_sel_hi:[1,0]")
            for i in range(4): a(f"v_rcp_f32 v{zz+i}, v{zz+i}")
            a("s_nop 0")
            for h in range(2):
                a(f"v_pk_mul_f32 {vr(c+2*h,2)}, {vr(c+2*h,2)}, {vr(zz+2*h,2)}")
            for h in range(2):
                a(f"v_cvt_pk_bf16_f32 v{outreg(rt,t)+h}, v{c+2*h}, v{c+2*h+1}")
        if t < 6 and t & 1:
            for rt in range(2):
                a(f"buffer_store_dwordx4 {vr(outreg(rt,t-1),4)}, v4, {srd('WS')}, s{56+rt} offen offset:{1024*(t>>1)} {ST}")
    o = OUT + 24
    a(f"s_nop 1\nv_permlane16_swap_b32 v{o}, v{o+2}\nv_permlane16_swap_b32 v{o+1}, v{o+3}")
    a(f"buffer_store_dwordx4 {vr(o,4)}, v5, {srd('WS')}, s58 offen {ST}")

def k1(a, name):
    a(kernel_begin(name))
    prologue(a, ["X","W1","WS"], "L1_end")
    gemm1(a)
    a("L1_end:\ns_endpgm")

CV_SC, CV_U, CV_CH = 4160, 16640, 21248
CV_PART = 3*CV_CH
def conv_fill(a):
    a(f"""s_mul_i32 s54, {sCG}, 80
s_mul_i32 s55, {sRB}, 5
s_add_u32 s54, s54, s55
s_add_u32 s66, s54, 4
s_lshl_b32 s55, {sMEM}, 1
s_add_u32 s64, s54, s55
s_add_u32 s65, s64, 1
v_lshlrev_b32 v2, 4, v0
v_subrev_u32 v3, 8, v2
v_mov_b32 v4, 0x80000000
v_cmp_eq_u32 vcc, 0, v0
s_nop 1
v_cndmask_b32 v3, v3, v4, vcc
s_waitcnt lgkmcnt(0)""")
    R, U = 8, 32
    for c in range(3):
        a(f"s_lshl_b32 s{67+c}, s{64+c}, 12")
        a(f"buffer_load_dwordx2 {vr(R+8*c,2)}, v3, {srd('SSM')}, s{67+c} offen")
        a(f"buffer_load_dwordx4 {vr(R+8*c+2,4)}, v2, {srd('SSM')}, s{67+c} offen")
    for c in range(3):
        a(f"buffer_load_dwordx4 {vr(U+4*c,4)}, v2, {srd('WS')}, s{67+c} offen {LD}")
    a(f"""v_mov_b32 v44, 0
v_mov_b32 v45, 0
v_mov_b32 v46, 0
v_mov_b32 v47, 0
v_add_u32 v5, {CV_U + 4096}, v2
v_subrev_u32 v6, 32, v0
v_lshrrev_b32 v7, 1, v6
v_and_b32 v6, 1, v6
v_mul_u32_u24 v7, {CV_SC}, v7
v_lshl_add_u32 v6, v6, 4, v7
v_cmp_gt_u32 vcc, 32, v0
s_nop 1
v_cndmask_b32 v5, v6, v5, vcc
v_cmp_gt_u32 vcc, 40, v0
s_and_saveexec_b64 s[60:61], vcc""")
    for c in range(3): a(f"ds_write_b128 v5, v[44:47] offset:{c*CV_CH}")
    a("s_mov_b64 exec, s[60:61]")
    Q = 48
    for c in range(3):
        r = R + 8*c
        a(f"s_waitcnt vmcnt({7-2*c})")
        for i in range(4): a(f"v_alignbit_b32 v{Q+i}, v{r+2+i}, v{r+1+i}, 16")
        a(f"v_pk_mov_b32 {vr(Q+4,2)}, {vr(r,2)}, {vr(r+2,2)} op_sel:[1,0]")
        a(f"v_pk_mov_b32 {vr(Q+6,2)}, {vr(r+2,2)}, {vr(r+4,2)} op_sel:[1,0]")
        for i in range(4): a(f"v_alignbit_b32 v{Q+8+i}, v{r+1+i}, v{r+i}, 16")
        a(f"ds_write_b128 v2, {vr(r+2,4)} offset:{c*CV_CH + 32}")
        for d in range(1, 4):
            a(f"ds_write_b128 v2, {vr(Q+4*(d-1),4)} offset:{c*CV_CH + d*CV_SC + 32}")
        a("s_waitcnt lgkmcnt(0)")
    for c in range(3):
        a(f"s_waitcnt vmcnt({2-c})")
        a(f"ds_write_b128 v2, {vr(U+4*c,4)} offset:{c*CV_CH + CV_U}")
    a("s_waitcnt lgkmcnt(0)\ns_barrier")

def conv_main(a):
    vT, vS, vP, vY = 8, 9, 10, 11
    TD, ACC, TF, SF = 12, 16, 48, 80
    a(f"""v_and_b32 v2, 15, v1
v_lshrrev_b32 v3, 4, v1
v_sub_u32 v4, 15, v2
v_and_b32 v5, 3, v4
v_mul_u32_u24 v5, {CV_SC}, v5
v_lshrrev_b32 v6, 2, v4
v_lshlrev_b32 v6, 3, v6
v_sub_u32 v5, v5, v6
v_lshl_add_u32 v5, v3, 4, v5
v_add_u32 v112, 32, v5
v_lshlrev_b32 v6, 5, v2
v_sub_u32 v6, {CV_U + 4064 - 3584}, v6
v_lshl_add_u32 v113, v3, 4, v6
s_and_b32 s54, {sW}, 1
s_mul_i32 s55, s54, {CV_CH}
s_lshr_b32 s56, {sW}, 1
s_mul_i32 s57, s56, 320
s_add_u32 s55, s55, s57
v_add_u32 v{vT}, s55, v112
v_add_u32 v{vS}, s55, v113
v_lshlrev_b32 v{vP}, 4, v1
s_lshl_b32 s55, s54, 13
s_add_u32 s55, s55, {CV_PART}
v_add_u32 v{vP}, s55, v{vP}
v_and_b32 v6, 1, v3
v_lshlrev_b32 v6, 9, v6
v_lshl_add_u32 v6, v2, 5, v6
v_lshrrev_b32 v7, 1, v3
v_lshl_add_u32 v{vY}, v7, 4, v6
s_min_u32 s55, {sW}, 2
s_cmp_eq_u32 s55, 0
s_cselect_b32 s58, s64, s65
s_cmp_eq_u32 s55, 2
s_cselect_b32 s58, s66, s58
s_lshl_b32 s59, s58, 1
v_mov_b32 v6, s59
buffer_load_ushort v7, v6, {srd('DD')}, 0 offen
v_lshlrev_b32 v6, 3, v3
v_sub_u32 v4, v4, v6
v_and_b32 v6, 1, v4
v_lshlrev_b32 v6, 4, v6
v_ashrrev_i32 v4, 1, v4
s_cmp_eq_u32 {sW}, 3
s_cselect_b32 s59, 0, -1
s_waitcnt vmcnt(0)
v_and_b32 v7, s59, v7
v_lshlrev_b32 v7, v6, v7""")
    for i in range(4):
        a(f"v_cmp_eq_u32 vcc, {i}, v4\ns_nop 1\nv_cndmask_b32 v{TD+i}, 0, v7, vcc")
    def rdT(i): return [f"ds_read_b64 {vr(TF+4*i,2)}, v{vT} offset:{512*i}", f"ds_read_b64 {vr(TF+4*i+2,2)}, v{vT} offset:{512*i+8}"]
    def rdS(i): return [f"ds_read_b128 {vr(SF+4*i,4)}, v{vS} offset:{3584-512*i}"]
    def mf(j, A, i2, slot=None):
        s = j if slot is None else slot
        c = vr(ACC+4*s, 4)
        return f"v_mfma_f32_16x16x32_bf16 {c}, {A}, {vr(SF+4*i2,4)}, {c}"
    def loop(tiles, cnt_sreg, lab, withD):
        mx = max(tiles)
        a(f"{lab}:")
        for i in range(mx+1):
            a("\n".join(rdT(i) + rdS(i)))
            if i % 4 == 3: a("s_waitcnt lgkmcnt(0)")
        a("s_waitcnt lgkmcnt(0)")
        a(f"v_add_u32 v{vT}, 64, v{vT}\nv_add_u32 v{vS}, 64, v{vS}")
        for i in range(mx+1):
            for s, j in enumerate(tiles):
                if j - i >= 0: a(mf(j, vr(TF+4*i,4), j-i, s))
        a(f"s_cmp_eq_u32 {withD}, 0\ns_cbranch_scc1 {lab}_nd")
        for s, j in enumerate(tiles): a(mf(j, vr(TD,4), j, s))
        a(f"s_mov_b32 {withD}, 0\n{lab}_nd:")
        a(f"s_sub_u32 {cnt_sreg}, {cnt_sreg}, 1\ns_cmp_lg_u32 {cnt_sreg}, 0\ns_cbranch_scc1 {lab}")
    def zero(n):
        for i in range(4*n): a(f"v_mov_b32 v{ACC+i}, 0")
    def finish(pairs, chreg):
        a(f"s_lshl_b32 s55, {chreg}, 12\ns_add_u32 s55, s55, {WS_YT}")
        for s, j in pairs:
            for e in range(2):
                a(f"ds_read_b128 {vr(TF+4*e,4)}, v{vP} offset:{1024*(s+e)}")
            a("s_waitcnt lgkmcnt(0)")
            for e in range(2):
                c = ACC + 4*(s+e)
                for h in range(2):
                    a(f"v_pk_add_f32 {vr(c+2*h,2)}, {vr(c+2*h,2)}, {vr(TF+4*e+2*h,2)}")
                for h in range(2):
                    a(f"v_cvt_pk_bf16_f32 v{SF+4*s+2*e+h}, v{c+2*h}, v{c+2*h+1}")
            o = SF + 4*s
            a(f"s_nop 1\nv_permlane16_swap_b32 v{o}, v{o+2}\nv_permlane16_swap_b32 v{o+1}, v{o+3}")
            a(f"buffer_store_dwordx4 {vr(o,4)}, v{vY}, {srd('WS')}, s55 offen offset:{512*j} {ST}")
    zero(8)
    a(f"s_cmp_eq_u32 s56, 0\ns_cselect_b32 s70, 5, 3\ns_cselect_b32 s71, 1, 0")
    loop(list(range(8)), "s70", "LC_full", "s71")
    a("s_nop 7\ns_cmp_eq_u32 s56, 0\ns_cbranch_scc0 LC_hi")
    a("s_barrier")
    finish([(0,0),(2,2),(4,4),(6,6)], "s58")
    a("s_branch LC_done\nLC_hi:")
    for j in range(8): a(f"ds_write_b128 v{vP}, {vr(ACC+4*j,4)} offset:{1024*j}")
    a(f"""s_lshl_b32 s55, s54, 8
s_add_u32 s55, s55, {2*CV_CH}
v_add_u32 v{vT}, s55, v112
v_add_u32 v{vS}, s55, v113
v_lshlrev_b32 v{vP}, 4, v1
v_add_u32 v{vP}, {CV_PART + 16384}, v{vP}
s_waitcnt lgkmcnt(0)""")
    zero(4)
    a(f"s_mov_b32 s70, 4\ns_mov_b32 s71, 1\ns_cmp_eq_u32 {sMEM}, 0\ns_cbranch_scc0 LC_m1")
    loop([0,1,6,7], "s70", "LC_h0", "s71")
    a("s_branch LC_hj\nLC_m1:")
    loop([2,3,4,5], "s70", "LC_h1", "s71")
    a(f"LC_hj:\ns_nop 7\ns_cmp_eq_u32 {sW}, 3\ns_cbranch_scc0 LC_w2")
    for j in range(4): a(f"ds_write_b128 v{vP}, {vr(ACC+4*j,4)} offset:{1024*j}")
    a("s_waitcnt lgkmcnt(0)\ns_barrier\ns_branch LC_done\nLC_w2:\ns_barrier")
    a(f"s_cmp_eq_u32 {sMEM}, 0\ns_cbranch_scc0 LC_f1")
    finish([(0,0),(2,6)], "s58")
    a("s_branch LC_done\nLC_f1:")
    finish([(0,2),(2,4)], "s58")
    a("LC_done:")

def k2(a, name):
    a(kernel_begin(name))
    prologue(a, ["SSM","DD","WS"], "L2_end")
    conv_fill(a); conv_main(a)
    a("L2_end:\ns_endpgm")

def w2reg(T, n, cnt=4, off=0):
    idx = (T*5 + n)*4 + off
    return ar(idx, cnt) if idx < 256 else vr(232 + idx - 256, cnt)
G2_STAGE = 0
G2_PART = 0
G2_Y = 81920
def gemm2(a):
    vF, vL, vR = 8, 13, 18
    a(f"""v_and_b32 v2, 15, v1
v_lshrrev_b32 v3, 4, v1
s_mul_i32 s54, {sW}, {448*1280}
s_mul_i32 s55, {sCG}, 160
s_add_u32 s54, s54, s55""")
    for c in range(320): assert (c*6554) >> 16 == c // 10
    for i in range(5):
        a(f"""v_add_u32 v4, {64*i}, v1
v_mul_u32_u24 v5, 6554, v4
v_lshrrev_b32 v5, 16, v5
v_mul_u32_u24 v6, 10, v5
v_sub_u32 v4, v4, v6
v_lshlrev_b32 v4, 4, v4
s_sub_u32 s55, s54, {1024*(i&3)}
v_add_u32 v4, s55, v4
v_mul_u32_u24 v6, 1280, v5
v_add_u32 v{vF+i}, v4, v6
v_bfe_u32 v6, v5, 3, 1
v_mul_u32_u24 v6, 112, v6
v_bfe_u32 v7, v5, 2, 1
v_lshl_add_u32 v6, v7, 3, v6
v_lshrrev_b32 v7, 4, v5
v_lshl_add_u32 v6, v7, 2, v6
v_and_b32 v7, 3, v5
v_add3_u32 v6, v6, v7, 64
v_add_u32 v6, 32, v6
v_mul_u32_u24 v6, 1280, v6
v_add_u32 v{vL+i}, v4, v6""")
    a(f"""v_lshrrev_b32 v5, 2, v2
v_lshl_add_u32 v5, v3, 2, v5
v_mul_u32_u24 v5, 160, v5
v_and_b32 v6, 3, v1
v_lshl_add_u32 v19, v6, 3, v5
s_mul_i32 s64, {sW}, {7*5120}
v_add_u32 v{vR}, s64, v19
s_waitcnt lgkmcnt(0)""")
    def dma(T):
        slot = T % 7
        if T < 12: so = (112*(T//3) + 32*(T%3))*1280; v = vF
        else: so = 224*(T-12)*1280; v = vL
        a(f"s_mov_b32 s65, {so}")
        for i in range(5):
            if i in (0, 4): a(f"s_add_u32 m0, s64, {slot*5120 + 1024*i}\ns_nop 0")
            a(f"buffer_load_dwordx4 v{v+i}, {srd('W2')}, s65 offen offset:{1024*(i&3)} lds")
    def trs(T):
        slot = T % 7
        for n in range(5):
            for h in range(2):
                a(f"ds_read_b64_tr_b16 {w2reg(T,n,2,2*h)}, v{vR} offset:{slot*5120 + n*32 + h*2560}")
        a("s_waitcnt lgkmcnt(0)")
    for T in range(7): dma(T)
    for T in range(14):
        a(f"s_waitcnt vmcnt({5*min(6, 13-T)})")
        trs(T)
        if T + 7 < 14: dma(T+7)
    a("s_barrier")
    HB, ACC, XR, YR = 24, 136, 176, 188
    a(f"""v_lshrrev_b32 v4, 3, v0
v_and_b32 v5, 7, v0
s_mul_i32 s54, {sCG}, 80
s_lshl_b32 s54, s54, 12
s_lshl_b32 s55, {sRT}, 7
s_add_u32 s54, s54, s55
s_add_u32 s66, s54, {WS_YT}
s_add_u32 s67, s66, {32*4096}
s_add_u32 s68, s66, {64*4096}
v_lshlrev_b32 v6, 12, v4
v_lshl_add_u32 v6, v5, 4, v6
v_mul_u32_u24 v7, 160, v4
v_lshl_add_u32 v7, v5, 4, v7
buffer_load_dwordx4 {vr(YR,4)}, v6, {srd('WS')}, s66 offen {LD}
buffer_load_dwordx4 {vr(YR+4,4)}, v6, {srd('WS')}, s67 offen {LD}
s_cmp_ge_u32 {sW}, 2
s_cbranch_scc1 L3_a
buffer_load_dwordx4 {vr(YR+8,4)}, v6, {srd('WS')}, s68 offen {LD}
s_waitcnt vmcnt(0)
ds_write_b128 v7, {vr(YR+8,4)} offset:{64*160}
L3_a:
s_waitcnt vmcnt(0)
ds_write_b128 v7, {vr(YR,4)}
ds_write_b128 v7, {vr(YR+4,4)} offset:{32*160}""".replace("ds_write_b128 v7,", "ds_write_b128 v20,").replace("buffer_load_dwordx4 v[188:191]", f"v_add_u32 v20, {G2_Y}, v7\nbuffer_load_dwordx4 v[188:191]"))
    a(f"""s_lshl_b32 s54, {sRT}, 6
s_lshl_b32 s55, {sW}, 4
s_add_u32 s54, s54, s55
v_add_u32 v4, s54, v2
v_lshlrev_b32 v5, 3, v4
v_add_u32 v5, {WS_ST}, v5
v_mul_u32_u24 v4, 1280, v4
v_lshl_add_u32 v4, v3, 3, v4
s_mul_i32 s54, {sCG}, 160
v_add_u32 v21, s54, v4
buffer_load_dwordx2 {vr(XR+10,2)}, v5, {srd('WS')}, 0 offen {LD}""")
    for n in range(5):
        a(f"buffer_load_dwordx2 {vr(XR+2*n,2)}, v21, {srd('X')}, 0 offen offset:{32*n}")
    a(f"v_lshlrev_b32 v22, 4, v1")
    for i in range(4):
        a(f"""s_add_u32 s54, {sW}, {i+1}
s_and_b32 s54, s54, 3
s_lshl_b32 s55, {sRT}, 2
s_add_u32 s55, s55, s54
s_mul_i32 s55, s55, 56
s_mul_i32 s56, {sW}, 14
s_add_u32 s55, s55, s56
s_lshl_b32 s55, s55, 10
s_add_u32 s{70+i}, s55, {WS_H}
s_lshl_b32 s54, s54, 2
s_add_u32 s54, s54, {sW}
s_mul_i32 s{74+i}, s54, 5120""")
    def hload(i, T):
        r = []
        if T % 4 == 0 and T > 0: r.append(f"s_add_u32 s{70+i}, s{70+i}, 4096")
        r.append(f"buffer_load_dwordx4 {vr(HB+56*(i&1)+4*T,4)}, v22, {srd('WS')}, s{70+i} offen offset:{1024*(T&3)} {LD}")
        return r
    for i in range(2):
        for T in range(14): a("\n".join(hload(i, T)))
    for i in range(4):
        for T in range(14):
            rem = 27 if i < 2 else (27 - T if i == 2 else 13 - T)
            a(f"s_waitcnt vmcnt({rem})")
            for n in range(5):
                c = vr(ACC + 20*(i&1) + 4*n, 4)
                a(f"v_mfma_f32_16x16x32_bf16 {c}, {w2reg(T,n)}, {vr(HB+56*(i&1)+4*T,4)}, {'0' if T == 0 else c}")
            if i < 2: a("\n".join(hload(i+2, T)))
            if T == 2 and i > 0:
                a(f"v_add_u32 v23, s{74+i-1}, v22")
                for n in range(5):
                    a(f"ds_write_b128 v23, {vr(ACC+20*((i-1)&1)+4*n,4)} offset:{G2_PART + 1024*n}")
    a("s_waitcnt lgkmcnt(0)\ns_barrier")
    A = ACC + 20
    a(f"s_mul_i32 s54, {sW}, {4*5120}")
    for k in range(1, 4):
        a(f"""s_add_u32 s55, {sW}, {k}
s_and_b32 s55, s55, 3
s_mul_i32 s55, s55, 5120
s_add_u32 s55, s55, s54
v_add_u32 v23, s55, v22""")
        for n in range(5):
            a(f"ds_read_b128 {vr(HB+20*(k-1)+4*n,4)}, v23 offset:{G2_PART + 1024*n}")
    a(f"s_lshl_b32 s54, {sW}, 5\ns_add_u32 s54, s54, {G2_Y}\nv_add_u32 v23, s54, v19\ns_waitcnt lgkmcnt(0)")
    for n in range(5):
        a(f"ds_read_b64_tr_b16 {vr(YR+2*n,2)}, v23 offset:{2560*n}")
    for k in range(1, 4):
        for n in range(10):
            a(f"v_pk_add_f32 {vr(A+2*n,2)}, {vr(A+2*n,2)}, {vr(HB+20*(k-1)+2*n,2)}")
    a("s_waitcnt lgkmcnt(0)")
    st = XR + 10
    for n in range(10):
        tx, ty = HB, HB + 2
        a(f"""v_lshlrev_b32 v{tx}, 16, v{XR+n}
v_and_b32 v{tx+1}, 0xffff0000, v{XR+n}
v_lshlrev_b32 v{ty}, 16, v{YR+n}
v_and_b32 v{ty+1}, 0xffff0000, v{YR+n}
v_pk_add_f32 {vr(A+2*n,2)}, {vr(A+2*n,2)}, {vr(tx,2)}
v_pk_add_f32 {vr(tx,2)}, {vr(tx,2)}, {vr(st,2)} op_sel_hi:[1,0] neg_lo:[0,1] neg_hi:[0,1]
v_pk_mul_f32 {vr(tx,2)}, {vr(tx,2)}, {vr(st,2)} op_sel:[0,1] op_sel_hi:[1,1]
v_pk_fma_f32 {vr(A+2*n,2)}, {vr(tx,2)}, {vr(ty,2)}, {vr(A+2*n,2)}
v_cvt_pk_bf16_f32 v{HB+4+n}, v{A+2*n}, v{A+2*n+1}""")
        if n & 1:
            a(f"buffer_store_dwordx2 {vr(HB+4+n-1,2)}, v21, {srd('OUT')}, 0 offen offset:{32*(n>>1)}")

def k3(a, name):
    a(kernel_begin(name))
    prologue(a, ["X","W2","OUT","WS"], "L3_end")
    gemm2(a)
    a("L3_end:\ns_endpgm")

def build_all(path, extra_empty=0):
    a = Asm()
    names = ["s0_kernel", "g1_kernel", "cv_kernel", "g2_kernel"]
    lds = [0, 3*G1_SLOT, CV_PART + 20480, 4*7*5120]
    ll = [f"; @launch kernel={n} grid=(256,1,1) block=(256,1,1) lds={l}" for n, l in zip(names, lds)]
    ll += ["; @launch kernel=nop_kernel grid=(256,1,1) block=(256,1,1) lds=0"] * extra_empty
    a(header(ll))
    k0(a, names[0]); k1(a, names[1]); k2(a, names[2]); k3(a, names[3])
    if extra_empty: a(kernel_begin("nop_kernel")); a("s_endpgm")
    a(rodata())
    a(kernel_desc(names[0], 160, 102, 160))
    a(".p2align 6"); a(kernel_desc(names[1], 352, 102, 256))
    a(".p2align 6"); a(kernel_desc(names[2], 128, 102, 128))
    a(".p2align 6"); a(kernel_desc(names[3], 512, 102, 256))
    if extra_empty: a(".p2align 6"); a(kernel_desc("nop_kernel", 8, 16, 8))
    open(path, "w").write(a.text())

if __name__ == "__main__":
    build_all(sys.argv[1], int(sys.argv[2]) if len(sys.argv) > 2 else 0)
```

```python
import sys
import gen1
from gen1 import *

def probe_kernel(a, kind):
    a(kernel_begin("probe_kernel"))
    a("s_cmp_ge_u32 s2, 256\ns_cbranch_scc1 LP_end")
    if kind.startswith("bx"):
        fl = "nt" if "nt" in kind else ""
        a("s_load_dwordx2 s[4:5], s[0:1], 48\ns_mov_b32 s6, 2621440\ns_mov_b32 s7, 0x20000")
        a("s_mul_i32 s8, s2, 10240\nv_lshlrev_b32 v1, 4, v0\ns_waitcnt lgkmcnt(0)")
        n = 1 if "one" in kind else 3
        for i in range(n):
            a(f"buffer_load_dwordx4 v[{4+4*i}:{7+4*i}], v1, s[4:7], s8 offen {fl}\ns_add_u32 s8, s8, 3072")
        a("s_waitcnt vmcnt(0)")
        if "chain" in kind:
            for i in range(8):
                a(f"s_add_u32 s8, s8, {327680+4096}\ns_cmp_ge_u32 s8, 2600000\ns_cselect_b32 s9, 2600000, 0\ns_sub_u32 s8, s8, s9")
                a("buffer_load_dwordx4 v[4:7], v1, s[4:7], s8 offen\ns_waitcnt vmcnt(0)")
    elif kind.startswith("ws"):
        fl = "nt" if "nt" in kind else ""
        a("s_load_dwordx2 s[4:5], s[0:1], 88\ns_mov_b32 s6, 0x10000000\ns_mov_b32 s7, 0x20000")
        a("s_lshl_b32 s8, s2, 16\ns_add_u32 s8, s8, 0x4000000\nv_lshlrev_b32 v1, 4, v0\ns_waitcnt lgkmcnt(0)")
        a(f"s_mov_b32 s9, 16\nLP_l:\nbuffer_load_dwordx4 v[4:7], v1, s[4:7], s8 offen {fl}\ns_add_u32 s8, s8, 4096\ns_sub_u32 s9, s9, 1\ns_cmp_lg_u32 s9, 0\ns_cbranch_scc1 LP_l")
        a("s_waitcnt vmcnt(0)")
    elif kind == "code":
        for i in range(2048): a(f"v_fma_f32 v{8+i%16}, v2, v3, v{8+i%16}")
    elif kind == "loop":
        a("s_mov_b32 s9, 16\nLP_l:")
        for i in range(128): a(f"v_fma_f32 v{8+i%16}, v2, v3, v{8+i%16}")
        a("s_sub_u32 s9, s9, 1\ns_cmp_lg_u32 s9, 0\ns_cbranch_scc1 LP_l")
    a("LP_end:\ns_endpgm")

def build(path, kind, order):
    a = Asm()
    names = ["s0_kernel", "g1_kernel", "cv_kernel", "g2_kernel", "probe_kernel"]
    lds = [0, 3*G1_SLOT, CV_PART + 20480, 4*7*5120, 0]
    ll = [f"; @launch kernel={names[i]} grid=(256,1,1) block=(256,1,1) lds={lds[i]}" for i in order]
    a(header(ll))
    k0(a, names[0]); k1(a, names[1]); k2(a, names[2]); k3(a, names[3])
    if 4 in order: probe_kernel(a, kind)
    a(rodata())
    a(kernel_desc(names[0], 160, 102, 160))
    a(".p2align 6"); a(kernel_desc(names[1], 352, 102, 256))
    a(".p2align 6"); a(kernel_desc(names[2], 128, 102, 128))
    a(".p2align 6"); a(kernel_desc(names[3], 512, 102, 256))
    if 4 in order: a(".p2align 6"); a(kernel_desc("probe_kernel", 32, 16, 32))
    open(path, "w").write(a.text())

if __name__ == "__main__":
    for spec in sys.argv[1:]:
        kind, order = spec.split(":")
        build(f"../cdna_kernels/p_{kind}_{order}.s", kind, [int(c) for c in order])
```

```python
import sys
from asmlib import *

S, D, F = 2048, 640, 1728
WS_KVT, WS_YT, WS_ST, WS_FL, WS_H, WS_END = 0, 0x280000, 0x500000, 0x508000, 0x600000, 0xD00000
SRD = dict(X=(4,0,S*D*2), K=(8,8,S*D*2), V=(12,16,S*D*2), SH=(16,24,D*8), SSM=(20,32,S*D*2), DD=(24,40,D*2),
           W1=(28,56,D*F*2), W2=(32,64,D*F*2), OUT=(36,72,S*D*2), DBG=(40,80,256), WS=(44,88,WS_END))
def srd(n): b = SRD[n][0]; return f"s[{b}:{b+3}]"
sRB, sG, sW, sCG, sMEM, sRT = "s48", "s49", "s50", "s51", "s52", "s53"
def vr(b, n=1): return f"v{b}" if n == 1 else f"v[{b}:{b+n-1}]"
def ar(b, n=1): return f"a{b}" if n == 1 else f"a[{b}:{b+n-1}]"
ST = "sc1"
LD = "sc1"

STAMP = False
WS_STAMP = 0x580000
_st = [0]
def stamp(a):
    if STAMP:
        a(f"s_memrealtime s[{80+2*_st[0]}:{81+2*_st[0]}]"); _st[0] += 1
        assert _st[0] <= 10
def stamp_end(a, kid):
    if not STAMP: return
    a("s_waitcnt vmcnt(0)"); stamp(a)
    a("s_waitcnt lgkmcnt(0)")
    n = _st[0]; _st[0] = 0
    a(f"s_lshl_b32 s3, s2, 2\ns_add_u32 s3, s3, {sW}\ns_lshl_b32 s3, s3, 6\ns_add_u32 s3, s3, {WS_STAMP + kid*65536}\nv_mov_b32 v2, s3\ns_mov_b64 exec, 1")
    for i in range(n):
        a(f"v_mov_b32 v3, s{80+2*i}\nbuffer_store_dword v3, v2, {srd('WS')}, 0 offen offset:{4*i}")
    a(f"v_mov_b32 v3, {n}\nbuffer_store_dword v3, v2, {srd('WS')}, 0 offen offset:60")

def prologue(a, use, endlab):
    stamp(a)
    a(f"s_cmp_ge_u32 s2, 256\ns_cbranch_scc1 {endlab}")
    for n in use:
        b, off, sz = SRD[n]
        a(f"s_load_dwordx2 s[{b}:{b+1}], s[0:1], {off}")
    for n in use:
        b, off, sz = SRD[n]
        a(f"s_mov_b32 s{b+2}, {sz}\ns_mov_b32 s{b+3}, 0x20000")
    a(f"""v_lshrrev_b32 v1, 6, v0
s_and_b32 {sRB}, s2, 3
s_lshl_b32 {sRB}, {sRB}, 2
s_lshr_b32 s3, s2, 6
s_add_u32 {sRB}, {sRB}, s3
v_readfirstlane_b32 {sW}, v1
s_lshl_b32 {sG}, s2, 1
s_and_b32 {sG}, {sG}, 8
s_bfe_u32 s3, s2, 0x30003
s_add_u32 {sG}, {sG}, s3
s_lshr_b32 {sCG}, {sG}, 1
s_and_b32 {sMEM}, {sG}, 1
s_lshl_b32 {sRT}, {sRB}, 1
s_add_u32 {sRT}, {sRT}, {sMEM}
v_and_b32 v1, 63, v0""")

def s0_kv(a):
    vA, vB, vS, vO = 2, 3, 4, 5
    KR, VR, WR = 8, 30, 46
    KF, WF, T = 56, 100, 116
    a(f"""v_cmp_gt_u32 vcc, 160, v0
s_and_saveexec_b64 s[60:61], vcc
v_and_b32 v6, 7, v0
v_lshrrev_b32 v7, 3, v0
s_lshl_b32 s54, {sRT}, 6
v_lshl_add_u32 v6, v6, 3, s54
s_mul_i32 s55, {sCG}, 20
v_add_u32 v7, s55, v7
v_mul_u32_u24 v{vA}, 1280, v6
v_lshl_add_u32 v{vA}, v7, 3, v{vA}
v_subrev_u32 v{vB}, 3840, v{vA}
v_cmp_eq_u32 vcc, 0, v6
v_mov_b32 v{vS}, 0x80000000
v_lshlrev_b32 v{vO}, 14, v7
v_cndmask_b32 v{vB}, v{vB}, v{vS}, vcc
v_lshlrev_b32 v{vS}, 5, v7
v_lshlrev_b32 v6, 1, v6
v_sub_u32 v6, {WS_KVT + 4080}, v6
v_add_u32 v{vO}, v{vO}, v6
s_mov_b32 s56, 5120
s_waitcnt lgkmcnt(0)""")
    a(f"buffer_load_dwordx4 {vr(WR,4)}, v{vS}, {srd('SH')}, 0 offen")
    a(f"buffer_load_dwordx4 {vr(WR+4,4)}, v{vS}, {srd('SH')}, 0 offen offset:16")
    for i in range(3):
        a(f"buffer_load_dwordx2 {vr(KR+2*i,2)}, v{vB}, {srd('K')}, 0 offen offset:{1280*i}")
    for i in range(8):
        so = "0" if i < 4 else "s56"
        a(f"buffer_load_dwordx2 {vr(KR+6+2*i,2)}, v{vA}, {srd('K')}, {so} offen offset:{1280*(i&3)}")
    for i in range(8):
        so = "0" if i < 4 else "s56"
        a(f"buffer_load_dwordx2 {vr(VR+2*i,2)}, v{vA}, {srd('V')}, {so} offen offset:{1280*(i&3)}")
    def lo(d, s): a(f"v_lshlrev_b32 v{d}, 16, v{s}")
    def hi(d, s): a(f"v_and_b32 v{d}, 0xffff0000, v{s}")
    a("s_waitcnt vmcnt(19)")
    for c in range(4):
        for jj in range(4):
            (hi if jj & 1 else lo)(WF + jj*4 + c, WR + 2*c + (jj >> 1))
    a("s_waitcnt vmcnt(8)")
    for i in range(11):
        for p in range(2):
            lo(KF + 4*i + 2*p, KR + 2*i + p); hi(KF + 4*i + 2*p + 1, KR + 2*i + p)
    a("s_waitcnt vmcnt(0)")
    for i in range(8):
        for p in range(2):
            r = T + 4*i + 2*p; tv = T + 32 + 2*p
            lo(tv, VR + 2*i + p); hi(tv + 1, VR + 2*i + p)
            a(f"v_pk_mul_f32 {vr(r,2)}, {vr(KF+4*(i+3)+2*p,2)}, {vr(WF+2*p,2)}")
            for jj in range(1, 4):
                a(f"v_pk_fma_f32 {vr(r,2)}, {vr(KF+4*(i+3-jj)+2*p,2)}, {vr(WF+4*jj+2*p,2)}, {vr(r,2)}")
            a(f"v_pk_mul_f32 {vr(r,2)}, {vr(r,2)}, {vr(tv,2)}")
    O = 8
    for c in range(4):
        for n in range(4):
            a(f"v_cvt_pk_bf16_f32 v{O+4*c+n}, v{T+4*(7-2*n)+c}, v{T+4*(6-2*n)+c}")
        a(f"s_mov_b32 s57, {4096*c}")
        a(f"buffer_store_dwordx4 {vr(O+4*c,4)}, v{vO}, {srd('WS')}, s57 offen {ST}")
    a("s_mov_b64 exec, s[60:61]")

def dpp_sum8(a, r):
    for m in ("quad_perm:[1,0,3,2]", "quad_perm:[2,3,0,1]", "row_half_mirror"):
        a(f"s_nop 1\nv_add_f32_dpp v{r}, v{r}, v{r} {m} row_mask:0xf bank_mask:0xf")

def s0_stats(a):
    XR, XF = 8, 48
    a(f"""v_lshrrev_b32 v2, 3, v1
s_lshl_b32 s54, {sRB}, 7
s_lshl_b32 s55, {sG}, 3
s_add_u32 s54, s54, s55
v_add_u32 v2, s54, v2
v_and_b32 v3, 7, v1
v_mul_u32_u24 v4, 1280, v2
v_lshl_add_u32 v4, v3, 4, v4
v_lshlrev_b32 v2, 3, v2
v_add_u32 v2, {WS_ST}, v2
s_waitcnt lgkmcnt(0)""")
    for i in range(10):
        a(f"buffer_load_dwordx4 {vr(XR+4*i,4)}, v4, {srd('X')}, 0 offen offset:{128*i}")
    a("v_mov_b32 v6, 0\nv_mov_b32 v7, 0")
    for i in range(10):
        a(f"s_waitcnt vmcnt({9-i})")
        for j in range(4):
            d = XF + 8*i + 2*j
            a(f"v_lshlrev_b32 v{d}, 16, v{XR+4*i+j}\nv_and_b32 v{d+1}, 0xffff0000, v{XR+4*i+j}")
            a(f"v_pk_add_f32 v[6:7], v[6:7], {vr(d,2)}")
    a("v_add_f32 v6, v6, v7")
    dpp_sum8(a, 6)
    a(f"v_mul_f32 v6, {hex(f32bits(1.0/640))}, v6")
    a("v_mov_b32 v8, 0\nv_mov_b32 v9, 0")
    for i in range(40):
        d = XF + 2*i
        a(f"v_pk_add_f32 {vr(d,2)}, {vr(d,2)}, v[6:7] op_sel_hi:[1,0] neg_lo:[0,1] neg_hi:[0,1]")
        a(f"v_pk_fma_f32 v[8:9], {vr(d,2)}, {vr(d,2)}, v[8:9]")
    a("v_add_f32 v8, v8, v9")
    dpp_sum8(a, 8)
    a(f"""v_mul_f32 v8, {hex(f32bits(1.0/640))}, v8
v_cvt_pk_bf16_f32 v8, v8, v6
v_and_b32 v6, 0xffff0000, v8
v_lshlrev_b32 v8, 16, v8
v_add_f32 v8, {hex(f32bits(1e-5))}, v8
v_cvt_pk_bf16_f32 v8, v8, v8
v_lshlrev_b32 v8, 16, v8
v_sqrt_f32 v8, v8
s_nop 0
v_cvt_pk_bf16_f32 v8, v8, v8
v_lshlrev_b32 v8, 16, v8
v_rcp_f32 v7, v8
v_cmp_eq_u32 vcc, 0, v3
s_and_saveexec_b64 s[60:61], vcc
buffer_store_dwordx2 v[6:7], v2, {srd('WS')}, 0 offen {ST}
s_mov_b64 exec, s[60:61]""")

import struct
def f32bits(x): return struct.unpack("<I", struct.pack("<f", x))[0]

def k0(a, name):
    a(kernel_begin(name))
    prologue(a, ["X","K","V","SH","WS"], "L0_end")
    a(f"s_cmp_eq_u32 {sW}, 3\ns_cbranch_scc1 L0_stats")
    s0_kv(a)
    a("s_branch L0_j\nL0_stats:")
    s0_stats(a)
    a("L0_j:"); stamp(a); stamp_end(a, 0)
    a("L0_end:\ns_endpgm")

G1_SLOT = 28672
def gemm1(a):
    vX, vD, vA = 8, 16, 24
    ACC, CS, AF, ONE = 32, 88, 116, 144
    XB = 0
    sGX, sGW, sM0 = 64, 70, 76
    a(f"""v_and_b32 v2, 15, v1
v_lshrrev_b32 v3, 4, v1
s_lshl_b32 s54, {sRB}, 7
s_lshl_b32 s55, {sW}, 5
s_add_u32 s54, s54, s55
v_add_u32 v4, s54, v2
v_mul_u32_u24 v4, 1280, v4
v_lshl_add_u32 v4, v3, 4, v4
v_lshrrev_b32 v5, 2, v2
v_lshl_add_u32 v5, v3, 2, v5
v_mul_u32_u24 v5, 224, v5
v_and_b32 v6, 3, v1
v_lshl_add_u32 v5, v6, 3, v5""")
    for u in range(4):
        a(f"""s_add_u32 s54, {sW}, {u}
s_and_b32 s54, s54, 3
s_lshl_b32 s55, s54, 6
s_mul_i32 s54, s54, 7168
v_add_u32 v{vX+2*u}, s55, v4
v_add_u32 v{vA+u}, s54, v5
v_add_u32 v{vX+2*u+1}, 20480, v{vX+2*u}""")
    for c in range(448): assert (c*4682) >> 16 == c // 14
    a(f"""s_mul_i32 s54, {sW}, {32*3456}
s_mul_i32 s55, {sG}, 224
s_add_u32 s54, s54, s55""")
    for i in range(7):
        a(f"""v_add_u32 v2, {64*i}, v1
v_mul_u32_u24 v3, 4682, v2
v_lshrrev_b32 v3, 16, v3
v_mul_u32_u24 v4, 14, v3
v_sub_u32 v2, v2, v4
v_bfe_u32 v4, v3, 2, 2
v_and_b32 v5, 3, v3
v_lshl_add_u32 v4, v4, 3, v5
v_lshrrev_b32 v5, 4, v3
v_lshl_add_u32 v4, v5, 2, v4
v_mul_u32_u24 v4, 3456, v4
v_lshl_add_u32 v4, v2, 4, v4
s_sub_u32 s55, s54, {1024*(i&3)}
v_add_u32 v{vD+i}, s55, v4""")
    a(f"""s_add_u32 s54, {sRB}, {sG}
s_mul_i32 s55, s54, 52
s_lshr_b32 s55, s55, 8
s_mul_i32 s55, s55, 5
s_sub_u32 s54, s54, s55""")
    for c in range(31): assert (c*52) >> 8 == c // 5
    for n in range(5):
        a(f"""s_lshl_b32 s{sGX+n}, s54, 8
s_mul_i32 s{sGW+n}, s54, {128*3456}
s_add_u32 s54, s54, 1
s_cmp_eq_u32 s54, 5
s_cselect_b32 s54, 0, s54""")
    a(f"s_mul_i32 s{sM0}, {sW}, 7168")
    for i in range(4): a(f"v_mov_b32 v{ONE+i}, 0x3f803f80")
    a("s_waitcnt lgkmcnt(0)")
    def loads(n):
        r = []; slot = n % 3
        for i in range(7):
            if i in (0, 4):
                r.append(f"s_add_u32 m0, s{sM0}, {slot*G1_SLOT + 1024*i}")
                r.append(xload(n, i//4))
            r.append(f"buffer_load_dwordx4 v{vD+i}, {srd('W1')}, s{sGW+n} offen offset:{1024*(i&3)} lds")
        for j in range(2, 8): r.append(xload(n, j))
        return r
    def xload(n, j):
        return f"buffer_load_dwordx4 {ar(XB+32*(n%3)+4*j,4)}, v{vX+j}, {srd('X')}, s{sGX+n} offen"
    def rd(n, u, t, h):
        return f"ds_read_b64_tr_b16 {vr(AF+4*t+2*h,2)}, v{vA+u} offset:{(n%3)*G1_SLOT + t*32 + h*3584}"
    for n in range(3):
        a("\n".join(loads(n)))
    stamp(a)
    a("s_waitcnt vmcnt(30)")
    stamp(a)
    for t in range(7):
        a(rd(0,0,t,0)); a(rd(0,0,t,1))
    for n in range(5):
        pend = loads(n+2) if 1 <= n <= 2 else []
        for u in range(4):
            nxt = (n, u+1) if u < 3 else ((n+1, 0) if n < 4 else None)
            if u == 0:
                a("s_barrier")
                if n in (1, 2, 3, 4) and STAMP: stamp(a); a("s_waitcnt lgkmcnt(0)")
            if u == 3 and n < 4:
                assert not pend
                a(f"s_waitcnt vmcnt({15 if n < 3 else 0})")
            for t in range(7):
                if t == 0: a("s_waitcnt lgkmcnt(6)")
                if t == 4: a(f"s_waitcnt lgkmcnt({8 if nxt else 0})")
                first = (n == 0 and u == 0)
                for rt in range(2):
                    c = vr(ACC + 28*rt + 4*t, 4)
                    a(f"v_mfma_f32_16x16x32_bf16 {c}, {vr(AF+4*t,4)}, {ar(XB+32*(n%3)+8*u+4*rt,4)}, {'0' if first else c}")
                    if rt == 0 and pend and t not in (0,): a(pend.pop(0))
                if u == 0:
                    c = vr(CS + 4*t, 4)
                    a(f"v_mfma_f32_16x16x32_bf16 {c}, {vr(AF+4*t,4)}, {vr(ONE,4)}, {'0' if n == 0 else c}")
                if nxt:
                    a(rd(nxt[0], nxt[1], t, 0)); a(rd(nxt[0], nxt[1], t, 1))
    STT = 8
    stamp(a)
    a(f"""v_and_b32 v2, 15, v1
v_lshrrev_b32 v3, 4, v1
s_lshl_b32 s54, {sRB}, 7
s_lshl_b32 s55, {sW}, 5
s_add_u32 s54, s54, s55
v_add_u32 v4, s54, v2
v_lshlrev_b32 v4, 3, v4
v_add_u32 v4, {WS_ST}, v4
buffer_load_dwordx2 v[8:9], v4, {srd('WS')}, 0 offen {LD}
buffer_load_dwordx2 v[10:11], v4, {srd('WS')}, 0 offen offset:128 {LD}
v_lshlrev_b32 v5, 4, v3
s_mul_i32 s54, {sW}, 448
v_add_u32 v6, s54, v5
v_cmp_eq_u32 vcc, 0, v2
s_barrier
s_and_saveexec_b64 s[60:61], vcc""")
    for t in range(7):
        a(f"ds_write_b128 v6, {vr(CS+4*t,4)} offset:{64*t}")
    a("s_mov_b64 exec, s[60:61]\ns_waitcnt lgkmcnt(0)\ns_barrier")
    TMP = 148
    for t in range(7):
        for w in range(4):
            d = CS + 4*t if w == 0 else TMP + 4*(w-1)
            a(f"ds_read_b128 {vr(d,4)}, v5 offset:{448*w + 64*t}")
        a("s_waitcnt lgkmcnt(0)")
        for w in range(1, 4):
            for h in range(2):
                a(f"v_pk_add_f32 {vr(CS+4*t+2*h,2)}, {vr(CS+4*t+2*h,2)}, {vr(TMP+4*(w-1)+2*h,2)}")
    a(f"""s_lshl_b32 s54, {sRB}, 3
s_lshl_b32 s55, {sW}, 1
s_add_u32 s54, s54, s55
s_mul_i32 s54, s54, 56
s_lshr_b32 s55, {sG}, 2
s_mul_i32 s55, s55, 14
s_add_u32 s54, s54, s55
s_and_b32 s55, {sG}, 3
s_mul_i32 s56, s55, 3
s_add_u32 s56, s56, s54
s_lshl_b32 s56, s56, 10
s_add_u32 s56, s56, {WS_H}
s_add_u32 s57, s56, {56*1024}
s_lshr_b32 s55, s55, 1
s_add_u32 s54, s54, s55
s_lshl_b32 s54, s54, 10
s_lshl_b32 s55, {sMEM}, 9
s_add_u32 s54, s54, s55
s_add_u32 s58, s54, {WS_H + 12*1024}
v_lshlrev_b32 v4, 4, v1
v_and_b32 v5, 1, v3
v_mul_u32_u24 v5, {56*1024}, v5
v_lshrrev_b32 v6, 1, v3
v_lshl_add_u32 v5, v6, 8, v5
v_lshl_add_u32 v5, v2, 4, v5
s_waitcnt vmcnt(0)
v_mul_f32 v12, {hex(f32bits(-1.4426950408889634))}, v9
v_mul_f32 v14, {hex(f32bits(-1.4426950408889634))}, v11""")
    stamp(a)
    OUT = 160
    def outreg(rt, t):
        return OUT + 12*rt + 2*t if t < 6 else OUT + 24 + 2*rt
    Z = 192
    for t in range(7):
        for rt in range(2):
            c = ACC + 28*rt + 4*t; st = STT + 2*rt; zz = Z + 4*rt
            for h in range(2):
                a(f"v_pk_fma_f32 {vr(c+2*h,2)}, {vr(CS+4*t+2*h,2)}, {vr(st,2)}, {vr(c+2*h,2)} op_sel_hi:[1,0,1] neg_lo:[0,1,0] neg_hi:[0,1,0]")
            for h in range(2):
                a(f"v_pk_mul_f32 {vr(zz+2*h,2)}, {vr(c+2*h,2)}, {vr(12+2*rt,2)} op_sel_hi:[1,0]")
            for i in range(4): a(f"v_exp_f32 v{zz+i}, v{zz+i}")
            for h in range(2):
                a(f"v_pk_mul_f32 {vr(c+2*h,2)}, {vr(c+2*h,2)}, {vr(st,2)} op_sel:[0,1] op_sel_hi:[1,1]")
            for h in range(2):
                a(f"v_pk_add_f32 {vr(zz+2*h,2)}, {vr(zz+2*h,2)}, 1.0 op_sel_hi:[1,0]")
            for i in range(4): a(f"v_rcp_f32 v{zz+i}, v{zz+i}")
            a("s_nop 0")
            for h in range(2):
                a(f"v_pk_mul_f32 {vr(c+2*h,2)}, {vr(c+2*h,2)}, {vr(zz+2*h,2)}")
            for h in range(2):
                a(f"v_cvt_pk_bf16_f32 v{outreg(rt,t)+h}, v{c+2*h}, v{c+2*h+1}")
        if t < 6 and t & 1:
            for rt in range(2):
                a(f"buffer_store_dwordx4 {vr(outreg(rt,t-1),4)}, v4, {srd('WS')}, s{56+rt} offen offset:{1024*(t>>1)} {ST}")
    o = OUT + 24
    a(f"s_nop 1\nv_permlane16_swap_b32 v{o}, v{o+2}\nv_permlane16_swap_b32 v{o+1}, v{o+3}")
    a(f"buffer_store_dwordx4 {vr(o,4)}, v5, {srd('WS')}, s58 offen {ST}")

def k1(a, name):
    a(kernel_begin(name))
    prologue(a, ["X","W1","WS"], "L1_end")
    gemm1(a); stamp_end(a, 1)
    a("L1_end:\ns_endpgm")

CV_SC, CV_U, CV_CH = 4160, 16640, 21248
CV_PART = 3*CV_CH
def conv_fill(a):
    a(f"""s_mul_i32 s54, {sCG}, 80
s_mul_i32 s55, {sRB}, 5
s_add_u32 s54, s54, s55
s_add_u32 s66, s54, 4
s_lshl_b32 s55, {sMEM}, 1
s_add_u32 s64, s54, s55
s_add_u32 s65, s64, 1
v_lshlrev_b32 v2, 4, v0
v_subrev_u32 v3, 8, v2
v_mov_b32 v4, 0x80000000
v_cmp_eq_u32 vcc, 0, v0
s_nop 1
v_cndmask_b32 v3, v3, v4, vcc
s_waitcnt lgkmcnt(0)""")
    R, U = 8, 32
    for c in range(3):
        a(f"s_lshl_b32 s{67+c}, s{64+c}, 12")
        a(f"buffer_load_dwordx2 {vr(R+8*c,2)}, v3, {srd('SSM')}, s{67+c} offen")
        a(f"buffer_load_dwordx4 {vr(R+8*c+2,4)}, v2, {srd('SSM')}, s{67+c} offen")
    for c in range(3):
        a(f"buffer_load_dwordx4 {vr(U+4*c,4)}, v2, {srd('WS')}, s{67+c} offen {LD}")
    a(f"""v_mov_b32 v44, 0
v_mov_b32 v45, 0
v_mov_b32 v46, 0
v_mov_b32 v47, 0
v_add_u32 v5, {CV_U + 4096}, v2
v_subrev_u32 v6, 32, v0
v_lshrrev_b32 v7, 1, v6
v_and_b32 v6, 1, v6
v_mul_u32_u24 v7, {CV_SC}, v7
v_lshl_add_u32 v6, v6, 4, v7
v_cmp_gt_u32 vcc, 32, v0
s_nop 1
v_cndmask_b32 v5, v6, v5, vcc
v_cmp_gt_u32 vcc, 40, v0
s_and_saveexec_b64 s[60:61], vcc""")
    for c in range(3): a(f"ds_write_b128 v5, v[44:47] offset:{c*CV_CH}")
    a("s_mov_b64 exec, s[60:61]")
    Q = 48
    for c in range(3):
        r = R + 8*c
        a(f"s_waitcnt vmcnt({7-2*c})")
        for i in range(4): a(f"v_alignbit_b32 v{Q+i}, v{r+2+i}, v{r+1+i}, 16")
        a(f"v_pk_mov_b32 {vr(Q+4,2)}, {vr(r,2)}, {vr(r+2,2)} op_sel:[1,0]")
        a(f"v_pk_mov_b32 {vr(Q+6,2)}, {vr(r+2,2)}, {vr(r+4,2)} op_sel:[1,0]")
        for i in range(4): a(f"v_alignbit_b32 v{Q+8+i}, v{r+1+i}, v{r+i}, 16")
        a(f"ds_write_b128 v2, {vr(r+2,4)} offset:{c*CV_CH + 32}")
        for d in range(1, 4):
            a(f"ds_write_b128 v2, {vr(Q+4*(d-1),4)} offset:{c*CV_CH + d*CV_SC + 32}")
        a("s_waitcnt lgkmcnt(0)")
    for c in range(3):
        a(f"s_waitcnt vmcnt({2-c})")
        a(f"ds_write_b128 v2, {vr(U+4*c,4)} offset:{c*CV_CH + CV_U}")
    a("s_waitcnt lgkmcnt(0)\ns_barrier")

def conv_main(a):
    vT, vS, vP, vY = 8, 9, 10, 11
    TD, ACC, TF, SF = 12, 16, 48, 80
    a(f"""v_and_b32 v2, 15, v1
v_lshrrev_b32 v3, 4, v1
v_sub_u32 v4, 15, v2
v_and_b32 v5, 3, v4
v_mul_u32_u24 v5, {CV_SC}, v5
v_lshrrev_b32 v6, 2, v4
v_lshlrev_b32 v6, 3, v6
v_sub_u32 v5, v5, v6
v_lshl_add_u32 v5, v3, 4, v5
v_add_u32 v112, 32, v5
v_lshlrev_b32 v6, 5, v2
v_sub_u32 v6, {CV_U + 4064 - 3584}, v6
v_lshl_add_u32 v113, v3, 4, v6
s_and_b32 s54, {sW}, 1
s_mul_i32 s55, s54, {CV_CH}
s_lshr_b32 s56, {sW}, 1
s_mul_i32 s57, s56, 320
s_add_u32 s55, s55, s57
v_add_u32 v{vT}, s55, v112
v_add_u32 v{vS}, s55, v113
v_lshlrev_b32 v{vP}, 4, v1
s_lshl_b32 s55, s54, 13
s_add_u32 s55, s55, {CV_PART}
v_add_u32 v{vP}, s55, v{vP}
v_and_b32 v6, 1, v3
v_lshlrev_b32 v6, 9, v6
v_lshl_add_u32 v6, v2, 5, v6
v_lshrrev_b32 v7, 1, v3
v_lshl_add_u32 v{vY}, v7, 4, v6
s_min_u32 s55, {sW}, 2
s_cmp_eq_u32 s55, 0
s_cselect_b32 s58, s64, s65
s_cmp_eq_u32 s55, 2
s_cselect_b32 s58, s66, s58
s_lshl_b32 s59, s58, 1
v_mov_b32 v6, s59
buffer_load_ushort v7, v6, {srd('DD')}, 0 offen
v_lshlrev_b32 v6, 3, v3
v_sub_u32 v4, v4, v6
v_and_b32 v6, 1, v4
v_lshlrev_b32 v6, 4, v6
v_ashrrev_i32 v4, 1, v4
s_cmp_eq_u32 {sW}, 3
s_cselect_b32 s59, 0, -1
s_waitcnt vmcnt(0)
v_and_b32 v7, s59, v7
v_lshlrev_b32 v7, v6, v7""")
    for i in range(4):
        a(f"v_cmp_eq_u32 vcc, {i}, v4\ns_nop 1\nv_cndmask_b32 v{TD+i}, 0, v7, vcc")
    def rdT(i): return [f"ds_read_b64 {vr(TF+4*i,2)}, v{vT} offset:{512*i}", f"ds_read_b64 {vr(TF+4*i+2,2)}, v{vT} offset:{512*i+8}"]
    def rdS(i): return [f"ds_read_b128 {vr(SF+4*i,4)}, v{vS} offset:{3584-512*i}"]
    def mf(j, A, i2, slot=None):
        s = j if slot is None else slot
        c = vr(ACC+4*s, 4)
        return f"v_mfma_f32_16x16x32_bf16 {c}, {A}, {vr(SF+4*i2,4)}, {c}"
    def loop(tiles, cnt_sreg, lab, withD):
        mx = max(tiles)
        a(f"{lab}:")
        for i in range(mx+1):
            a("\n".join(rdT(i) + rdS(i)))
            if i % 4 == 3: a("s_waitcnt lgkmcnt(0)")
        a("s_waitcnt lgkmcnt(0)")
        a(f"v_add_u32 v{vT}, 64, v{vT}\nv_add_u32 v{vS}, 64, v{vS}")
        for i in range(mx+1):
            for s, j in enumerate(tiles):
                if j - i >= 0: a(mf(j, vr(TF+4*i,4), j-i, s))
        a(f"s_cmp_eq_u32 {withD}, 0\ns_cbranch_scc1 {lab}_nd")
        for s, j in enumerate(tiles): a(mf(j, vr(TD,4), j, s))
        a(f"s_mov_b32 {withD}, 0\n{lab}_nd:")
        a(f"s_sub_u32 {cnt_sreg}, {cnt_sreg}, 1\ns_cmp_lg_u32 {cnt_sreg}, 0\ns_cbranch_scc1 {lab}")
    def zero(n):
        for i in range(4*n): a(f"v_mov_b32 v{ACC+i}, 0")
    def finish(pairs, chreg):
        a(f"s_lshl_b32 s55, {chreg}, 12\ns_add_u32 s55, s55, {WS_YT}")
        for s, j in pairs:
            for e in range(2):
                a(f"ds_read_b128 {vr(TF+4*e,4)}, v{vP} offset:{1024*(s+e)}")
            a("s_waitcnt lgkmcnt(0)")
            for e in range(2):
                c = ACC + 4*(s+e)
                for h in range(2):
                    a(f"v_pk_add_f32 {vr(c+2*h,2)}, {vr(c+2*h,2)}, {vr(TF+4*e+2*h,2)}")
                for h in range(2):
                    a(f"v_cvt_pk_bf16_f32 v{SF+4*s+2*e+h}, v{c+2*h}, v{c+2*h+1}")
            o = SF + 4*s
            a(f"s_nop 1\nv_permlane16_swap_b32 v{o}, v{o+2}\nv_permlane16_swap_b32 v{o+1}, v{o+3}")
            a(f"buffer_store_dwordx4 {vr(o,4)}, v{vY}, {srd('WS')}, s55 offen offset:{512*j} {ST}")
    stamp(a)
    zero(8)
    a(f"s_cmp_eq_u32 s56, 0\ns_cselect_b32 s70, 5, 3\ns_cselect_b32 s71, 1, 0")
    loop(list(range(8)), "s70", "LC_full", "s71")
    stamp(a)
    a("s_nop 7\ns_cmp_eq_u32 s56, 0\ns_cbranch_scc0 LC_hi")
    a("s_barrier")
    finish([(0,0),(2,2),(4,4),(6,6)], "s58")
    a("s_branch LC_done\nLC_hi:")
    for j in range(8): a(f"ds_write_b128 v{vP}, {vr(ACC+4*j,4)} offset:{1024*j}")
    a(f"""s_lshl_b32 s55, s54, 8
s_add_u32 s55, s55, {2*CV_CH}
v_add_u32 v{vT}, s55, v112
v_add_u32 v{vS}, s55, v113
v_lshlrev_b32 v{vP}, 4, v1
v_add_u32 v{vP}, {CV_PART + 16384}, v{vP}
s_waitcnt lgkmcnt(0)""")
    zero(4)
    a(f"s_mov_b32 s70, 4\ns_mov_b32 s71, 1\ns_cmp_eq_u32 {sMEM}, 0\ns_cbranch_scc0 LC_m1")
    loop([0,1,6,7], "s70", "LC_h0", "s71")
    a("s_branch LC_hj\nLC_m1:")
    loop([2,3,4,5], "s70", "LC_h1", "s71")
    a(f"LC_hj:\ns_nop 7\ns_cmp_eq_u32 {sW}, 3\ns_cbranch_scc0 LC_w2")
    for j in range(4): a(f"ds_write_b128 v{vP}, {vr(ACC+4*j,4)} offset:{1024*j}")
    a("s_waitcnt lgkmcnt(0)\ns_barrier\ns_branch LC_done\nLC_w2:\ns_barrier")
    a(f"s_cmp_eq_u32 {sMEM}, 0\ns_cbranch_scc0 LC_f1")
    finish([(0,0),(2,6)], "s58")
    a("s_branch LC_done\nLC_f1:")
    finish([(0,2),(2,4)], "s58")
    a("LC_done:"); stamp(a)

def k2(a, name):
    a(kernel_begin(name))
    prologue(a, ["SSM","DD","WS"], "L2_end")
    conv_fill(a); stamp(a); conv_main(a); stamp_end(a, 2)
    a("L2_end:\ns_endpgm")

def w2reg(T, n, cnt=4, off=0):
    idx = (T*5 + n)*4 + off
    return ar(idx, cnt) if idx < 256 else vr(232 + idx - 256, cnt)
G2_STAGE = 0
G2_PART = 0
G2_Y = 81920
def gemm2(a):
    vF, vL, vR = 8, 13, 18
    a(f"""v_and_b32 v2, 15, v1
v_lshrrev_b32 v3, 4, v1
s_mul_i32 s54, {sW}, {448*1280}
s_mul_i32 s55, {sCG}, 160
s_add_u32 s54, s54, s55""")
    for c in range(320): assert (c*6554) >> 16 == c // 10
    for i in range(5):
        a(f"""v_add_u32 v4, {64*i}, v1
v_mul_u32_u24 v5, 6554, v4
v_lshrrev_b32 v5, 16, v5
v_mul_u32_u24 v6, 10, v5
v_sub_u32 v4, v4, v6
v_lshlrev_b32 v4, 4, v4
s_sub_u32 s55, s54, {1024*(i&3)}
v_add_u32 v4, s55, v4
v_mul_u32_u24 v6, 1280, v5
v_add_u32 v{vF+i}, v4, v6
v_bfe_u32 v6, v5, 3, 1
v_mul_u32_u24 v6, 112, v6
v_bfe_u32 v7, v5, 2, 1
v_lshl_add_u32 v6, v7, 3, v6
v_lshrrev_b32 v7, 4, v5
v_lshl_add_u32 v6, v7, 2, v6
v_and_b32 v7, 3, v5
v_add3_u32 v6, v6, v7, 64
v_add_u32 v6, 32, v6
v_mul_u32_u24 v6, 1280, v6
v_add_u32 v{vL+i}, v4, v6""")
    a(f"""v_lshrrev_b32 v5, 2, v2
v_lshl_add_u32 v5, v3, 2, v5
v_mul_u32_u24 v5, 160, v5
v_and_b32 v6, 3, v1
v_lshl_add_u32 v19, v6, 3, v5
s_mul_i32 s64, {sW}, {7*5120}
v_add_u32 v{vR}, s64, v19
s_waitcnt lgkmcnt(0)""")
    def dma(T):
        slot = T % 7
        if T < 12: so = (112*(T//3) + 32*(T%3))*1280; v = vF
        else: so = 224*(T-12)*1280; v = vL
        a(f"s_mov_b32 s65, {so}")
        for i in range(5):
            if i in (0, 4): a(f"s_add_u32 m0, s64, {slot*5120 + 1024*i}\ns_nop 0")
            a(f"buffer_load_dwordx4 v{v+i}, {srd('W2')}, s65 offen offset:{1024*(i&3)} lds")
    def trs(T):
        slot = T % 7
        for n in range(5):
            for h in range(2):
                a(f"ds_read_b64_tr_b16 {w2reg(T,n,2,2*h)}, v{vR} offset:{slot*5120 + n*32 + h*2560}")
        a("s_waitcnt lgkmcnt(0)")
    stamp(a)
    for T in range(7): dma(T)
    stamp(a)
    for T in range(14):
        a(f"s_waitcnt vmcnt({5*min(6, 13-T)})")
        trs(T)
        if T + 7 < 14: dma(T+7)
    a("s_barrier")
    stamp(a)
    HB, ACC, XR, YR = 24, 136, 176, 188
    a(f"""v_lshrrev_b32 v4, 3, v0
v_and_b32 v5, 7, v0
s_mul_i32 s54, {sCG}, 80
s_lshl_b32 s54, s54, 12
s_lshl_b32 s55, {sRT}, 7
s_add_u32 s54, s54, s55
s_add_u32 s66, s54, {WS_YT}
s_add_u32 s67, s66, {32*4096}
s_add_u32 s68, s66, {64*4096}
v_lshlrev_b32 v6, 12, v4
v_lshl_add_u32 v6, v5, 4, v6
v_mul_u32_u24 v7, 160, v4
v_lshl_add_u32 v7, v5, 4, v7
buffer_load_dwordx4 {vr(YR,4)}, v6, {srd('WS')}, s66 offen {LD}
buffer_load_dwordx4 {vr(YR+4,4)}, v6, {srd('WS')}, s67 offen {LD}
s_cmp_ge_u32 {sW}, 2
s_cbranch_scc1 L3_a
buffer_load_dwordx4 {vr(YR+8,4)}, v6, {srd('WS')}, s68 offen {LD}
s_waitcnt vmcnt(0)
ds_write_b128 v7, {vr(YR+8,4)} offset:{64*160}
L3_a:
s_waitcnt vmcnt(0)
ds_write_b128 v7, {vr(YR,4)}
ds_write_b128 v7, {vr(YR+4,4)} offset:{32*160}""".replace("ds_write_b128 v7,", "ds_write_b128 v20,").replace("buffer_load_dwordx4 v[188:191]", f"v_add_u32 v20, {G2_Y}, v7\nbuffer_load_dwordx4 v[188:191]"))
    a(f"""s_lshl_b32 s54, {sRT}, 6
s_lshl_b32 s55, {sW}, 4
s_add_u32 s54, s54, s55
v_add_u32 v4, s54, v2
v_lshlrev_b32 v5, 3, v4
v_add_u32 v5, {WS_ST}, v5
v_mul_u32_u24 v4, 1280, v4
v_lshl_add_u32 v4, v3, 3, v4
s_mul_i32 s54, {sCG}, 160
v_add_u32 v21, s54, v4
buffer_load_dwordx2 {vr(XR+10,2)}, v5, {srd('WS')}, 0 offen {LD}""")
    for n in range(5):
        a(f"buffer_load_dwordx2 {vr(XR+2*n,2)}, v21, {srd('X')}, 0 offen offset:{32*n}")
    a(f"v_lshlrev_b32 v22, 4, v1")
    for i in range(4):
        a(f"""s_add_u32 s54, {sW}, {i+1}
s_and_b32 s54, s54, 3
s_lshl_b32 s55, {sRT}, 2
s_add_u32 s55, s55, s54
s_mul_i32 s55, s55, 56
s_mul_i32 s56, {sW}, 14
s_add_u32 s55, s55, s56
s_lshl_b32 s55, s55, 10
s_add_u32 s{70+i}, s55, {WS_H}
s_lshl_b32 s54, s54, 2
s_add_u32 s54, s54, {sW}
s_mul_i32 s{74+i}, s54, 5120""")
    def hload(i, T):
        r = []
        if T % 4 == 0 and T > 0: r.append(f"s_add_u32 s{70+i}, s{70+i}, 4096")
        r.append(f"buffer_load_dwordx4 {vr(HB+56*(i&1)+4*T,4)}, v22, {srd('WS')}, s{70+i} offen offset:{1024*(T&3)} {LD}")
        return r
    stamp(a)
    for i in range(2):
        for T in range(14): a("\n".join(hload(i, T)))
    stamp(a)
    for i in range(4):
        for T in range(14):
            rem = 27 if i < 2 else (27 - T if i == 2 else 13 - T)
            a(f"s_waitcnt vmcnt({rem})")
            for n in range(5):
                c = vr(ACC + 20*(i&1) + 4*n, 4)
                a(f"v_mfma_f32_16x16x32_bf16 {c}, {w2reg(T,n)}, {vr(HB+56*(i&1)+4*T,4)}, {'0' if T == 0 else c}")
            if i < 2: a("\n".join(hload(i+2, T)))
            if T == 2 and i > 0:
                a(f"v_add_u32 v23, s{74+i-1}, v22")
                for n in range(5):
                    a(f"ds_write_b128 v23, {vr(ACC+20*((i-1)&1)+4*n,4)} offset:{G2_PART + 1024*n}")
    a("s_waitcnt lgkmcnt(0)\ns_barrier")
    A = ACC + 20
    stamp(a)
    a(f"s_mul_i32 s54, {sW}, {4*5120}")
    for k in range(1, 4):
        a(f"""s_add_u32 s55, {sW}, {k}
s_and_b32 s55, s55, 3
s_mul_i32 s55, s55, 5120
s_add_u32 s55, s55, s54
v_add_u32 v23, s55, v22""")
        for n in range(5):
            a(f"ds_read_b128 {vr(HB+20*(k-1)+4*n,4)}, v23 offset:{G2_PART + 1024*n}")
    a(f"s_lshl_b32 s54, {sW}, 5\ns_add_u32 s54, s54, {G2_Y}\nv_add_u32 v23, s54, v19\ns_waitcnt lgkmcnt(0)")
    for n in range(5):
        a(f"ds_read_b64_tr_b16 {vr(YR+2*n,2)}, v23 offset:{2560*n}")
    for k in range(1, 4):
        for n in range(10):
            a(f"v_pk_add_f32 {vr(A+2*n,2)}, {vr(A+2*n,2)}, {vr(HB+20*(k-1)+2*n,2)}")
    a("s_waitcnt lgkmcnt(0)")
    st = XR + 10
    for n in range(10):
        tx, ty = HB, HB + 2
        a(f"""v_lshlrev_b32 v{tx}, 16, v{XR+n}
v_and_b32 v{tx+1}, 0xffff0000, v{XR+n}
v_lshlrev_b32 v{ty}, 16, v{YR+n}
v_and_b32 v{ty+1}, 0xffff0000, v{YR+n}
v_pk_add_f32 {vr(A+2*n,2)}, {vr(A+2*n,2)}, {vr(tx,2)}
v_pk_add_f32 {vr(tx,2)}, {vr(tx,2)}, {vr(st,2)} op_sel_hi:[1,0] neg_lo:[0,1] neg_hi:[0,1]
v_pk_mul_f32 {vr(tx,2)}, {vr(tx,2)}, {vr(st,2)} op_sel:[0,1] op_sel_hi:[1,1]
v_pk_fma_f32 {vr(A+2*n,2)}, {vr(tx,2)}, {vr(ty,2)}, {vr(A+2*n,2)}
v_cvt_pk_bf16_f32 v{HB+4+n}, v{A+2*n}, v{A+2*n+1}""")
        if n & 1:
            a(f"buffer_store_dwordx2 {vr(HB+4+n-1,2)}, v21, {srd('OUT')}, 0 offen offset:{32*(n>>1)}")

def k3(a, name):
    a(kernel_begin(name))
    prologue(a, ["X","W2","OUT","WS"], "L3_end")
    gemm2(a); stamp(a); stamp_end(a, 3)
    a("L3_end:\ns_endpgm")

def build_all(path, extra_empty=0):
    a = Asm()
    names = ["s0_kernel", "g1_kernel", "cv_kernel", "g2_kernel"]
    lds = [0, 3*G1_SLOT, CV_PART + 20480, 4*7*5120]
    ll = [f"; @launch kernel={n} grid=(256,1,1) block=(256,1,1) lds={l}" for n, l in zip(names, lds)]
    ll += ["; @launch kernel=nop_kernel grid=(256,1,1) block=(256,1,1) lds=0"] * extra_empty
    a(header(ll))
    k0(a, names[0]); k1(a, names[1]); k2(a, names[2]); k3(a, names[3])
    if extra_empty: a(kernel_begin("nop_kernel")); a("s_endpgm")
    a(rodata())
    a(kernel_desc(names[0], 160, 102, 160))
    a(".p2align 6"); a(kernel_desc(names[1], 352, 102, 256))
    a(".p2align 6"); a(kernel_desc(names[2], 128, 102, 128))
    a(".p2align 6"); a(kernel_desc(names[3], 512, 102, 256))
    if extra_empty: a(".p2align 6"); a(kernel_desc("nop_kernel", 8, 16, 8))
    open(path, "w").write(a.text())

if __name__ == "__main__":
    if "--stamp" in sys.argv: STAMP = True; sys.argv.remove("--stamp")
    build_all(sys.argv[1], int(sys.argv[2]) if len(sys.argv) > 2 else 0)
```

```python
import sys
import gen1
from gen1 import *

def probe_kernel(a, kind):
    a(kernel_begin("probe_kernel"))
    a("s_cmp_ge_u32 s2, 256\ns_cbranch_scc1 LP_end")
    if kind.startswith("bx"):
        fl = "nt" if "nt" in kind else ""
        a("s_load_dwordx2 s[4:5], s[0:1], 48\ns_mov_b32 s6, 2621440\ns_mov_b32 s7, 0x20000")
        a("s_mul_i32 s8, s2, 10240\nv_lshlrev_b32 v1, 4, v0\ns_waitcnt lgkmcnt(0)")
        n = 1 if "one" in kind else 3
        for i in range(n):
            a(f"buffer_load_dwordx4 v[{4+4*i}:{7+4*i}], v1, s[4:7], s8 offen {fl}\ns_add_u32 s8, s8, 3072")
        a("s_waitcnt vmcnt(0)")
        if "chain" in kind:
            for i in range(8):
                a(f"s_add_u32 s8, s8, {327680+4096}\ns_cmp_ge_u32 s8, 2600000\ns_cselect_b32 s9, 2600000, 0\ns_sub_u32 s8, s8, s9")
                a("buffer_load_dwordx4 v[4:7], v1, s[4:7], s8 offen\ns_waitcnt vmcnt(0)")
    elif kind.startswith("lat"):
        arg = 48 if "x" in kind else 88
        base = 0 if "x" in kind else 0x4000000
        rounds = 10
        rep = 2 if "2" in kind else 1
        a(f"s_load_dwordx2 s[4:5], s[0:1], {arg}\ns_mov_b32 s6, {2621440 if 'x' in kind else 0x10000000}\ns_mov_b32 s7, 0x20000")
        a("v_lshlrev_b32 v1, 2, v0\ns_waitcnt lgkmcnt(0)")
        for r in range(rep):
            a(f"s_add_u32 s8, s2, {r}\ns_and_b32 s8, s8, 255\ns_lshl_b32 s8, s8, 10\ns_add_u32 s8, s8, {base}")
            a(f"s_mov_b32 s9, {rounds}\nLP_l{r}:\nbuffer_load_dword v4, v1, s[4:7], s8 offen\ns_add_u32 s8, s8, 262144\ns_sub_u32 s9, s9, 1\ns_cmp_lg_u32 s9, 0\ns_waitcnt vmcnt(0)\ns_cbranch_scc1 LP_l{r}")
    elif kind.startswith("ws"):
        fl = "nt" if "nt" in kind else ""
        a("s_load_dwordx2 s[4:5], s[0:1], 88\ns_mov_b32 s6, 0x10000000\ns_mov_b32 s7, 0x20000")
        a("s_lshl_b32 s8, s2, 16\ns_add_u32 s8, s8, 0x4000000\nv_lshlrev_b32 v1, 4, v0\ns_waitcnt lgkmcnt(0)")
        a(f"s_mov_b32 s9, 16\nLP_l:\nbuffer_load_dwordx4 v[4:7], v1, s[4:7], s8 offen {fl}\ns_add_u32 s8, s8, 4096\ns_sub_u32 s9, s9, 1\ns_cmp_lg_u32 s9, 0\ns_cbranch_scc1 LP_l")
        a("s_waitcnt vmcnt(0)")
    elif kind == "code":
        for i in range(2048): a(f"v_fma_f32 v{8+i%16}, v2, v3, v{8+i%16}")
    elif kind == "loop":
        a("s_mov_b32 s9, 16\nLP_l:")
        for i in range(128): a(f"v_fma_f32 v{8+i%16}, v2, v3, v{8+i%16}")
        a("s_sub_u32 s9, s9, 1\ns_cmp_lg_u32 s9, 0\ns_cbranch_scc1 LP_l")
    a("LP_end:\ns_endpgm")

def build(path, kind, order):
    a = Asm()
    names = ["s0_kernel", "g1_kernel", "cv_kernel", "g2_kernel", "probe_kernel"]
    lds = [0, 3*G1_SLOT, CV_PART + 20480, 4*7*5120, 0]
    ll = [f"; @launch kernel={names[i]} grid=(256,1,1) block=(256,1,1) lds={lds[i]}" for i in order]
    a(header(ll))
    k0(a, names[0]); k1(a, names[1]); k2(a, names[2]); k3(a, names[3])
    if 4 in order: probe_kernel(a, kind)
    a(rodata())
    a(kernel_desc(names[0], 160, 102, 160))
    a(".p2align 6"); a(kernel_desc(names[1], 352, 102, 256))
    a(".p2align 6"); a(kernel_desc(names[2], 128, 102, 128))
    a(".p2align 6"); a(kernel_desc(names[3], 512, 102, 256))
    if 4 in order: a(".p2align 6"); a(kernel_desc("probe_kernel", 32, 16, 32))
    open(path, "w").write(a.text())

if __name__ == "__main__":
    for spec in sys.argv[1:]:
        kind, order = spec.split(":")
        build(f"../cdna_kernels/p_{kind}_{order}.s", kind, [int(c) for c in order])
```

```python
import sys, struct
from asmlib import *

S, D, F = 2048, 640, 1728
WS_KVT, WS_YT, WS_ST, WS_FL, WS_STAMP, WS_H, WS_PM, WS_END = 0, 0x280000, 0x500000, 0x508000, 0x580000, 0x600000, 0xD00000, 0x1000000
FK, FS, F2, F3, F4 = WS_FL, WS_FL + 16*128, WS_FL + 32*128, WS_FL + 10*128*0 + 64*128, WS_FL + 72*128
FL_BYTES = 5*4096
SRD = dict(X=(4,0,S*D*2), K=(8,8,S*D*2), V=(12,16,S*D*2), SH=(16,24,D*8), SSM=(20,32,S*D*2), DD=(24,40,D*2),
           W1=(28,56,D*F*2), W2=(32,64,D*F*2), OUT=(36,72,S*D*2), DBG=(40,80,256), WS=(44,88,WS_END))
def srd(n): b = SRD[n][0]; return f"s[{b}:{b+3}]"
sXCD, sSLOT, sW, sRB, sG, sRB2, sCG, sCH, sKX, sKW, sMX, sMW = [f"s{i}" for i in range(48, 60)]
sHF = "s75"
def vr(b, n=1): return f"v{b}" if n == 1 else f"v[{b}:{b+n-1}]"
def ar(b, n=1): return f"a{b}" if n == 1 else f"a[{b}:{b+n-1}]"
def f32bits(x): return struct.unpack("<I", struct.pack("<f", x))[0]
ST = LD = "sc1"
OOB = 0x80000000
SPIN_MAX = 200000
L_X, L_W = 0, 49152
CV_SC, CV_U, CV_CH = 4160, 16640, 21248
L_CV = 98304
L_CSX = L_CV + 3*CV_CH + 256
assert L_CSX % 512 == 0
LDS_TOTAL = L_CSX + 512
GAP = [16384*i + 10240 for i in range(6)]
L_PA, L_PB, L_Y, L_XS = 0, 61440, 122880, 136192

class Opt:
    stamp = 0
    pf_code = 1
    f1_at = 1
    ntile = 5
    kchk = 8
    hflag_at = 30
    depth = 10
    nt = 1
    shadow_red = 0
    rotm = 3
    dbgA = 0
    kvplain = 0
    touch = 1
opt = Opt()
def NT(): return "nt" if opt.nt else ""

class K(Asm):
    def __init__(self):
        super().__init__(); self.q = []; self.ool = []
    def vm(self, text, tag=None):
        self(text); self.q.append(tag)
    def emit(self, item):
        if isinstance(item, tuple):
            if item[0] == "WAITVM": self.waitvm(item[1])
            else: self.vm(item[0], item[1])
        else: self(item)
    def cnt(self, tag):
        idx = max(i for i, t in enumerate(self.q) if t == tag)
        return sum(1 for t in self.q[idx+1:] if not (t or "").startswith("?"))
    def waitvm(self, tag, extra=""):
        n = min(63, self.cnt(tag))
        self(f"s_waitcnt vmcnt({n}) {extra}".strip())
    def stamp(self, name):
        names = STAMPSETS.get(opt.stamp, [])
        for idx, alts in enumerate(names):
            if name in alts.split("|"): self(f"s_memrealtime s[{76+2*idx}:{77+2*idx}]")

STAMPSETS = {
 1: ["t0", "g0|a_end", "g2|a_flag", "g5|a_it0", "g8|a_it2", "silu|a_join", "conv", "cv0", "g2s", "f2ok", "f3ok", "fin", "end"],
 2: ["t0", "karg", "dma0i", "setup", "g0|a_it0", "g1", "g2|a_it2", "g5|a_end", "g7", "g8|a_flag", "g9", "silu|a_join", "conv"],
 3: ["t0", "conv", "cv0", "c16", "c32", "c64", "c96", "c128", "c150", "c180", "cve", "g2s", "f2ok"],
 4: ["t0", "f2ok", "k0", "k7", "k14", "k26", "k31", "k41", "f3ok", "k55", "f4ok", "fin", "end"],
}

def weave(a, mains, fills, per=2):
    fills = list(fills)
    for m in mains:
        a.emit(m)
        for _ in range(per):
            if fills: a.emit(fills.pop(0))
    return fills
def groups(items):
    out = []; cur = []
    for it in items:
        cur.append(it)
        if isinstance(it, tuple): out.append(cur); cur = []
    if cur:
        if out: out[-1] += cur
        else: out.append(cur)
    return out
def weave2(a, mains, fills, timed):
    fills = list(fills); tq = []
    for i, m in enumerate(mains):
        a.emit(m)
        tq += timed.get(i, [])
        for sl in range(2):
            if tq and (sl == 1 or not fills): a.emit(tq.pop(0))
            elif fills: a.emit(fills.pop(0))
    return fills + tq
def spread(items, nslots):
    out = [[] for _ in range(nslots)]
    for i, it in enumerate(items): out[min(nslots-1, i*nslots//max(1,len(items)))].append(it)
    return out

def spin_body(name, vreg, load, sleep, tail):
    return f"""LS_{name}:
s_mov_b32 s62, 0
LS2_{name}:
{load}
s_add_u32 s62, s62, 1
s_waitcnt vmcnt(0)
v_cmp_ne_u32 vcc, 1, v{vreg}
s_cmp_lt_u32 s62, {SPIN_MAX}
s_cbranch_vccz LS3_{name}
s_sleep {sleep}
s_cbranch_scc1 LS2_{name}
LS3_{name}:
{tail}
s_branch LR_{name}"""
def spin_check(a, name, vreg, load, sleep=2):
    a(f"v_cmp_ne_u32 vcc, 1, v{vreg}\ns_nop 0\ns_cbranch_vccnz LS_{name}\nLR_{name}:")
    a.ool.append(spin_body(name, vreg, load, sleep, ""))

vFL, vONE = 2, 3
vXD, vWD, vXR, vWR = 4, 8, 12, 14
vL16, vT16 = 18, 19
B0 = 20
vW2D, vW2R = 244, 249
vDBG, vFA, vFLG, vDV, vF2 = 250, 251, 252, 253, 254
vPF = 255

def flag_store(a, base_sreg, v=vFL):
    a.vm(f"buffer_store_byte v{vONE}, v{v}, {srd('WS')}, {base_sreg} offen {ST}", "flag")
def dbg_load(): return f"buffer_load_dword v{vDBG}, off, {srd('DBG')}, 0 {LD}"
def fa_load(): return f"buffer_load_ubyte v{vFLG}, v{vFA}, {srd('WS')}, 0 offen {LD}"

def srd_load(a, names):
    for n in names:
        b, off, sz = SRD[n]; a(f"s_load_dwordx2 s[{b}:{b+1}], s[0:1], {off}")
def srd_fix(a, names):
    for n in names:
        b, off, sz = SRD[n]; a(f"s_mov_b32 s{b+2}, {sz}\ns_mov_b32 s{b+3}, 0x20000")
FIRST = ["X", "W1", "K", "V", "SH", "WS"]
REST = [n for n in SRD if n not in FIRST]
SXR = 228
def prologue(a):
    a.stamp("t0")
    srd_load(a, FIRST)
    a(f"""s_cmp_ge_u32 s2, 256
s_cbranch_scc1 L_end
v_lshrrev_b32 v1, 6, v0
s_and_b32 {sXCD}, s2, 7
s_lshr_b32 {sSLOT}, s2, 3
s_and_b32 s62, {sXCD}, 3
v_readfirstlane_b32 {sW}, v1
v_and_b32 v1, 63, v0
s_lshr_b32 {sHF}, {sXCD}, 2
s_lshl_b32 s62, s62, 2
s_sub_u32 s64, {sSLOT}, 4
s_mul_i32 s65, s64, 37
s_lshr_b32 s65, s65, 8
s_mul_i32 s3, s65, 7
s_sub_u32 s64, s64, s3
s_cmp_lt_u32 {sSLOT}, 4
s_cselect_b32 s65, {sSLOT}, s65
s_cselect_b32 s64, 7, s64
s_add_u32 {sRB}, s62, s65
s_lshl_b32 s3, {sHF}, 3
s_add_u32 s3, s3, s64
s_lshl_b32 s68, {sRB}, 7
s_add_u32 s71, s3, s68
s_lshl_b32 s3, s3, 3
s_add_u32 s3, s3, s68
v_lshrrev_b32 v{SXR+10}, 5, v0
v_add_u32 v{SXR+10}, s3, v{SXR+10}
v_and_b32 v{SXR+11}, 31, v0
v_mul_u32_u24 v20, 1280, v{SXR+10}
v_lshl_add_u32 v{SXR+12}, v{SXR+11}, 3, v20""")
    srd_fix(a, ["X", "WS"])
    for j in range(28): assert (j*37) >> 8 == j // 7
    a(f"s_cmp_lt_u32 {sSLOT}, 4\ns_cbranch_scc1 L_A")
    a(f"s_mul_i32 {sG}, {sHF}, 7\ns_add_u32 {sG}, {sG}, s64")
    srd_fix(a, ["W1"])

def stats_loads(a):
    for i in range(5):
        a.vm(f"buffer_load_dwordx2 {vr(SXR+2*i,2)}, v{SXR+12}, {srd('X')}, 0 offen offset:{256*i}", "sx")

def common_setup(a):
    srd_load(a, REST)
    if opt.pf_code:
        a(f"""s_getpc_b64 s[60:61]
{a.lab('Lpc')}:
s_sub_u32 s60, s60, Lpc_{a.nlab} - {NAME}_kernel
s_subb_u32 s61, s61, 0
s_mul_i32 s3, {sSLOT}, 1408
v_min_u32 v20, 10, v0
v_lshl_add_u32 v20, v20, 7, s3""")
        a.vm(f"global_load_dword v{vPF}, v20, s[60:61]", "pf")
    srd_fix(a, REST)
    a(f"""v_lshlrev_b32 v{vL16}, 4, v1
v_mov_b32 v{vONE}, 1
v_min_u32 v{vFL}, 1, v0
v_lshlrev_b32 v{vFL}, 31, v{vFL}
s_lshr_b32 s3, {sSLOT}, 3
s_add_u32 {sRB2}, s62, s3
s_and_b32 {sCG}, {sSLOT}, 7
s_mul_i32 {sCH}, {sXCD}, 80
s_lshr_b32 s3, {sSLOT}, 1
s_mul_i32 s3, s3, 5
s_add_u32 {sCH}, {sCH}, s3
s_add_u32 s71, s71, {FS}""")

def sum32(a, r, t):
    for m in ("quad_perm:[1,0,3,2]", "quad_perm:[2,3,0,1]", "row_half_mirror", "row_mirror"):
        a(f"s_nop 1\nv_add_f32_dpp v{r}, v{r}, v{r} {m} row_mask:0xf bank_mask:0xf")
    a(f"v_mov_b32 v{t}, v{r}\ns_nop 1\nv_permlane16_swap_b32 v{t}, v{r}\ns_nop 1\nv_add_f32 v{r}, v{r}, v{t}")
def stats_compute(a, XF, init=False):
    m, v = XF + 20, XF + 22
    vo = SXR + 10
    a(f"""v_min_u32 v{SXR+11}, 1, v{SXR+11}
v_lshlrev_b32 v{SXR+11}, 31, v{SXR+11}
v_lshl_add_u32 v{vo}, v{vo}, 3, v{SXR+11}
v_add_u32 v{vo}, {WS_ST}, v{vo}""")
    a.waitvm("sx", "lgkmcnt(0)")
    if init: a.vm(f"buffer_store_dword v{vONE}, v{vF2}, {srd('DBG')}, 0 offen {ST}", "initflag")
    for i in range(10):
        d = XF + 2*i
        a(f"v_lshlrev_b32 v{d}, 16, v{SXR+i}\nv_and_b32 v{d+1}, 0xffff0000, v{SXR+i}")
        if i == 1: a(f"v_pk_add_f32 {vr(m,2)}, {vr(XF,2)}, {vr(d,2)}")
        elif i > 1: a(f"v_pk_add_f32 {vr(m,2)}, {vr(m,2)}, {vr(d,2)}")
    a(f"v_add_f32 v{m}, v{m}, v{m+1}")
    sum32(a, m, XF + 24)
    a(f"v_mul_f32 v{m}, {hex(f32bits(1.0/640))}, v{m}")
    for i in range(10):
        d = XF + 2*i
        a(f"v_pk_add_f32 {vr(d,2)}, {vr(d,2)}, {vr(m,2)} op_sel_hi:[1,0] neg_lo:[0,1] neg_hi:[0,1]")
        if i == 0: a(f"v_pk_mul_f32 {vr(v,2)}, {vr(d,2)}, {vr(d,2)}")
        else: a(f"v_pk_fma_f32 {vr(v,2)}, {vr(d,2)}, {vr(d,2)}, {vr(v,2)}")
    a(f"v_add_f32 v{v}, v{v}, v{v+1}")
    sum32(a, v, XF + 24)
    a(f"""v_mul_f32 v{v}, {hex(f32bits(1.0/640))}, v{v}
v_cvt_pk_bf16_f32 v{v}, v{v}, v{m}
v_and_b32 v{m}, 0xffff0000, v{v}
v_lshlrev_b32 v{v}, 16, v{v}
v_add_f32 v{v}, {hex(f32bits(1e-5))}, v{v}
v_cvt_pk_bf16_f32 v{v}, v{v}, v{v}
v_lshlrev_b32 v{v}, 16, v{v}
v_sqrt_f32 v{v}, v{v}
s_nop 0
v_cvt_pk_bf16_f32 v{v}, v{v}, v{v}
v_lshlrev_b32 v{v}, 16, v{v}
v_rcp_f32 v{m+1}, v{v}
s_nop 0""")
    a.vm(f"buffer_store_dwordx2 {vr(m,2)}, v{vo}, {srd('WS')}, 0 offen {ST}", "s0st")

def g1_addr(a):
    t = B0
    a(f"""s_add_u32 s3, {sG}, {sRB}
s_mul_i32 s3, s3, {opt.rotm}
s_mul_i32 s66, s3, 205
s_lshr_b32 s66, s66, 11
s_mul_i32 s66, s66, 10
s_sub_u32 s3, s3, s66
s_lshl_b32 {sKX}, s3, 7
s_mul_i32 {sKW}, s3, {64*3456}
s_lshl_b32 {sMX}, {sW}, 12
s_add_u32 {sMW}, {sMX}, {L_W}
v_lshrrev_b32 v{t}, 3, v1
v_lshrrev_b32 v{t+1}, 4, v1
s_lshl_b32 s3, {sRB}, 7
s_lshl_b32 s66, {sW}, 5
s_add_u32 s3, s3, s66
v_add_u32 v{t}, s3, v{t}
v_mul_u32_u24 v{t}, 1280, v{t}
v_and_b32 v{t+2}, 7, v1
v_xor_b32 v{t+2}, v{t+2}, v{t+1}
v_lshl_add_u32 v{vXD}, v{t+2}, 4, v{t}
v_xor_b32 v{vXD+1}, 64, v{vXD}
v_add_u32 v{vXD+2}, {16*1280-2048}, v{vXD}
v_add_u32 v{vXD+3}, {24*1280-3072}, v{vXD+1}
v_add_u32 v{vXD+1}, {8*1280-1024}, v{vXD+1}
s_lshr_b32 s3, {sW}, 1
s_and_b32 s66, {sW}, 1
s_lshl_b32 s67, s3, 5
s_lshl_b32 s68, s66, 2
s_add_u32 s67, s67, s68
v_add_u32 v{t}, s67, v{t+1}
v_mul_u32_u24 v{t}, 3456, v{t}
v_and_b32 v{t+2}, 15, v1
v_lshlrev_b32 v{t+3}, 1, v{t+1}
v_xor_b32 v{t+3}, v{t+3}, v{t+2}
v_lshlrev_b32 v{t+3}, 4, v{t+3}
s_lshl_b32 s67, {sG}, 8
v_add3_u32 v{vWD}, v{t}, v{t+3}, s67
v_xor_b32 v{t+3}, 128, v{t+3}
v_add3_u32 v{vWD+1}, v{t}, v{t+3}, s67
v_add_u32 v{vWD+2}, {16*3456-2048}, v{vWD}
v_add_u32 v{vWD+3}, {24*3456-3072}, v{vWD+1}
v_add_u32 v{vWD+1}, {8*3456-1024}, v{vWD+1}""")
    for c in range(300): assert (c*205) >> 11 == c // 10

def g1_addr2(a):
    t = B0
    a(f"""s_lshr_b32 s3, {sW}, 1
s_and_b32 s66, {sW}, 1
v_and_b32 v{t}, 15, v1
v_lshrrev_b32 v{t+1}, 4, v1
v_lshrrev_b32 v{t+2}, 1, v{t}
v_xor_b32 v{t+2}, v{t+2}, v{t+1}
v_lshlrev_b32 v{t+2}, 4, v{t+2}
v_lshl_add_u32 v{t+2}, v{t}, 7, v{t+2}
s_lshl_b32 s67, s3, 13
v_add_u32 v{vXR}, s67, v{t+2}
v_xor_b32 v{vXR+1}, 64, v{vXR}
v_lshrrev_b32 v{t}, 2, v1
v_and_b32 v{t+1}, 7, v{t}
s_lshl_b32 s66, s66, 1
s_add_u32 s66, s66, s3
s_lshl_b32 s66, s66, 1
v_xor_b32 v{t+1}, s66, v{t+1}
v_lshlrev_b32 v{t+1}, 5, v{t+1}
v_lshl_add_u32 v{t+1}, v{t}, 8, v{t+1}
v_and_b32 v{t}, 3, v1
v_lshl_add_u32 v{t+1}, v{t}, 3, v{t+1}
v_add_u32 v{vWR}, {L_W}, v{t+1}
v_xor_b32 v{vWR+1}, 32, v{vWR}
v_xor_b32 v{vWR+2}, 64, v{vWR}
v_xor_b32 v{vWR+3}, 96, v{vWR}""")

def g1_dma(n):
    slot = n % 3; r = []
    r.append(f"s_add_u32 m0, {sMX}, {slot*16384}")
    r.append("s_nop 0")
    for i in range(4): r.append((f"buffer_load_dwordx4 v{vXD+i}, {srd('X')}, {sKX} offen offset:{1024*i} lds", f"dma{n}"))
    r.append(f"s_add_u32 m0, {sMW}, {slot*16384}")
    r.append(f"s_add_u32 {sKX}, {sKX}, 128")
    for i in range(4): r.append((f"buffer_load_dwordx4 v{vWD+i}, {srd('W1')}, {sKW} offen offset:{1024*i} lds", f"dma{n}"))
    r.append(f"s_cmp_eq_u32 {sKX}, 1280")
    r.append(f"s_cselect_b32 {sKX}, 0, {sKX}")
    r.append(f"s_mul_i32 {sKW}, {sKX}, 1728")
    return r

HR, UR = 196, 216
sC0, sC1, sC2 = "s72", "s73", "s74"
def ch_setup(a):
    a(f"""s_and_b32 s3, {sSLOT}, 1
s_lshl_b32 s3, s3, 1
s_add_u32 s3, s3, {sCH}
s_lshl_b32 {sC0}, s3, 12
s_add_u32 {sC1}, {sC0}, 4096
s_add_u32 s3, {sCH}, 4
s_lshl_b32 {sC2}, s3, 12""")
def h_loads():
    vp = HR + 18
    r = [f"v_subrev_u32 v{vp}, 8, v{vT16}", f"v_min_u32 v{vp}, {OOB}, v{vp}"]
    for c, sc in enumerate((sC0, sC1, sC2)):
        r.append((f"buffer_load_dwordx2 {vr(HR+6*c,2)}, v{vp}, {srd('SSM')}, {sc} offen", "h"))
        r.append((f"buffer_load_dwordx4 {vr(HR+6*c+2,4)}, v{vT16}, {srd('SSM')}, {sc} offen", "h"))
    r += [f"s_cmp_eq_u32 {sW}, 0", f"s_cselect_b32 s69, {sC0}, {sC1}", f"s_cmp_ge_u32 {sW}, 2", f"s_cselect_b32 s69, {sC2}, s69",
          "s_lshr_b32 s3, s69, 11", (f"buffer_load_ushort v{vDV}, off, {srd('DD')}, s3", "h")]
    return r
def u_loads(tag):
    return [(f"buffer_load_dwordx4 {vr(UR+4*c,4)}, v{vT16}, {srd('WS')}, {sc} offen {LD}", tag) for c, sc in enumerate((sC0, sC1, sC2))]
def h_zero(a, Q):
    vz = Q + 7
    a(f"""v_mov_b32 v{Q}, 0
v_mov_b32 v{Q+1}, 0
v_mov_b32 v{Q+2}, 0
v_mov_b32 v{Q+3}, 0
v_add_u32 v{Q+4}, {CV_U + 4096}, v{vT16}
v_subrev_u32 v{Q+5}, 32, v0
v_lshrrev_b32 v{Q+6}, 1, v{Q+5}
v_and_b32 v{Q+5}, 1, v{Q+5}
v_cmp_gt_u32 vcc, 32, v0
v_mul_u32_u24 v{Q+6}, {CV_SC}, v{Q+6}
v_lshl_add_u32 v{Q+5}, v{Q+5}, 4, v{Q+6}
v_cndmask_b32 v{vz}, v{Q+5}, v{Q+4}, vcc
v_add_u32 v{vz}, {L_CV}, v{vz}
v_cmp_gt_u32 vcc, 40, v0
s_and_saveexec_b64 s[60:61], vcc""")
    for c in range(3): a(f"ds_write_b128 v{vz}, {vr(Q,4)} offset:{c*CV_CH}")
    a("s_mov_b64 exec, s[60:61]")
vHA = HR + 18
def h_fill(c, Q):
    r = HR + 6*c; o = c*CV_CH
    out = [f"ds_write_b128 v{vHA}, {vr(r+2,4)} offset:{o + 32}"]
    out += [f"v_alignbit_b32 v{Q+i}, v{r+2+i}, v{r+1+i}, 16" for i in range(4)]
    out.append(f"ds_write_b128 v{vHA}, {vr(Q,4)} offset:{o + CV_SC + 32}")
    out += [f"v_mov_b32 v{Q+4+i}, v{r+1+i}" for i in range(4)]
    out.append(f"ds_write_b128 v{vHA}, {vr(Q+4,4)} offset:{o + 2*CV_SC + 32}")
    out += [f"v_alignbit_b32 v{Q+8+i}, v{r+1+i}, v{r+i}, 16" for i in range(4)]
    out.append(f"ds_write_b128 v{vHA}, {vr(Q+8,4)} offset:{o + 3*CV_SC + 32}")
    return out
def fk_addr():
    t = vFLG
    return [f"s_lshr_b32 s3, {sCH}, 6", "s_lshl_b32 s3, s3, 7", f"s_add_u32 s62, {sCH}, 4", "s_lshr_b32 s62, s62, 6", "s_lshl_b32 s62, s62, 7",
            "s_sub_u32 s62, s62, s3", f"s_add_u32 s3, s3, {FK}", f"v_bfe_u32 v{t}, v1, 4, 1", f"v_mul_u32_u24 v{t}, s62, v{t}",
            f"v_and_b32 v{vFA}, 15, v1", f"v_add3_u32 v{vFA}, v{vFA}, v{t}, s3"]

sW2M = "s70"
def w2_setup(a, t):
    for c in range(320): assert (c*6554) >> 16 == c // 10
    a(f"""s_mul_i32 s3, {sHF}, 28
s_mul_i32 s62, {sW}, 7
s_add_u32 s3, s3, s62
s_mul_i32 s3, s3, {32*1280}
s_mul_i32 s62, {sCG}, 160
s_add_u32 s3, s3, s62""")
    for i in range(5):
        a(f"""v_add_u32 v{t}, {64*i}, v1
v_mul_u32_u24 v{t}, 6554, v{t}
v_lshrrev_b32 v{t}, 16, v{t}
v_mul_u32_u24 v{t}, {1280-160}, v{t}
v_add3_u32 v{vW2D+i}, v{t}, v{vL16}, s3""")
    a(f"""v_add_u32 v{vW2D+4}, 4096, v{vW2D+4}
s_lshr_b32 s3, {sW}, 1
s_mul_i32 s3, s3, {L_W}
s_and_b32 s62, {sW}, 1
s_mul_i32 s62, s62, 5120
s_add_u32 {sW2M}, s3, s62
v_lshrrev_b32 v{t}, 2, v1
v_mul_u32_u24 v{t}, 160, v{t}
v_and_b32 v{t+1}, 3, v1
v_lshlrev_b32 v{t+1}, 3, v{t+1}
v_add3_u32 v{vW2R}, v{t}, v{t+1}, {sW2M}""")
def w2buf(u): return ((u + 1) % 3) * 16384
def w2_dma(u):
    r = [f"s_add_u32 m0, {sW2M}, {w2buf(u)}", f"s_mov_b32 s71, {u*32*1280}"]
    for i in range(4): r.append((f"buffer_load_dwordx4 v{vW2D+i}, {srd('W2')}, s71 offen offset:{1024*i} lds", f"w2_{u}"))
    r += [f"s_add_u32 m0, {sW2M}, {w2buf(u) + 4096}", "s_nop 0", (f"buffer_load_dwordx4 v{vW2D+4}, {srd('W2')}, s71 offen lds", f"w2_{u}")]
    return r
def w2_tr(u):
    return [f"ds_read_b64_tr_b16 {ar((u*5+n)*4+2*h,2)}, v{vW2R} offset:{w2buf(u) + n*32 + h*2560}" for n in range(5) for h in range(2)]

def g_start(a):
    g1_addr(a)
    a(f"""s_lshl_b32 s3, s2, 2
s_add_u32 s3, s3, {sW}
s_cmp_eq_u32 s3, 128
s_cselect_b32 s63, 0, {OOB}
s_waitcnt lgkmcnt(0)
s_cbranch_scc1 LS_init
LR_init:""")
    a.ool.append(f"""LS_init:
v_mov_b32 v20, 0
v_mov_b32 v21, 0
v_mov_b32 v22, 0
v_mov_b32 v23, 0
v_lshrrev_b32 v24, 1, v1
v_and_b32 v25, 1, v1
v_lshlrev_b32 v25, 4, v25
v_lshl_add_u32 v24, v24, 7, v25
""" + "\n".join(f"s_mov_b32 s3, {WS_FL + 4096*i}\nbuffer_store_dwordx4 v[20:23], v24, {srd('WS')}, s3 offen {ST}" for i in range(FL_BYTES//4096)) + f"""
s_branch LR_init""")
    a.stamp("karg")
    stats_loads(a)
    for it in g1_dma(0): a.emit(it)
    a.stamp("dma0i")
    a(f"v_lshlrev_b32 v{vT16}, 4, v0")
    common_setup(a)
    a(f"v_or_b32 v{vF2}, s63, v{vFL}")
    g1_setup(a)
    a.stamp("setup")
    stats_compute(a, 24, True)
    for it in g1_dma(1): a.emit(it)

ACC1, AF, BF = 20, 84, 116
STT, CSR, ONES = 148, 156, 172
def g1_setup(a):
    h_zero(a, 100); g1_addr2(a); ch_setup(a); w2_setup(a, 20)
    for i in range(4): a(f"v_mov_b32 v{ONES+i}, 0x3f803f80")
    a(f"""v_and_b32 v{vFA}, 15, v1
s_lshl_b32 s3, {sRB}, 7
s_add_u32 s3, s3, {FS}
v_add_u32 v{vFA}, s3, v{vFA}
v_and_b32 v176, 15, v1
s_lshr_b32 s3, {sW}, 1
s_lshl_b32 s3, s3, 6
s_lshl_b32 s62, {sRB}, 7
s_add_u32 s3, s3, s62
s_lshl_b32 s3, s3, 3
s_add_u32 s3, s3, {WS_ST}
v_lshl_add_u32 v176, v176, 3, s3
v_and_b32 v177, 0x30, v1
s_lshl_b32 s3, {sW}, 7
s_add_u32 s3, s3, {L_CSX}
v_add_u32 v177, s3, v177
v_xor_b32 v178, 256, v177
s_sub_u32 s3, {sSLOT}, 4
s_lshl_b32 s3, s3, 2
s_add_u32 s3, s3, {sW}
s_mul_i32 s62, {sHF}, 112
s_add_u32 s3, s3, s62
s_mul_i32 s3, s3, {80*128}
v_min_u32 v179, 39, v1
v_lshl_add_u32 v179, v179, 8, s3""")
def gemm1(a):
    def rdA(n, ks, t, h, buf): return f"ds_read_b64_tr_b16 {vr(AF+16*buf+4*t+2*h,2)}, v{vWR+t} offset:{(n%3)*16384 + ks*8192 + h*4096}"
    def rdB(n, ks, rt, buf): return f"ds_read_b128 {vr(BF+16*buf+4*rt,4)}, v{vXR+ks} offset:{(n%3)*16384 + rt*2048}"
    def reads(n, ks):
        b = ks; r = [rdA(n,ks,0,0,b), rdA(n,ks,0,1,b)] + [rdB(n,ks,rt,b) for rt in range(4)]
        for t in range(1, 4): r += [rdA(n,ks,t,0,b), rdA(n,ks,t,1,b)]
        return r
    a.waitvm("dma0"); a("s_barrier")
    a.stamp("g0")
    a("\n".join(reads(0, 0)))
    carry = []
    for n in range(10):
        for ks in range(2):
            nxt = (n, 1) if ks == 0 else ((n+1, 0) if n < 9 else None)
            late = []; gs = []
            if (n, ks) == (0, 0): gs = groups(g1_dma(2))
            if ks == 1 and n < 9:
                a.waitvm("fs" if n == 6 else "dbg" if n == opt.f1_at else f"dma{n+1}", "lgkmcnt(0)")
                a("s_barrier")
                if n == opt.f1_at:
                    spin_check(a, "dbg", vDBG, dbg_load())
                    flag_store(a, "s71")
                if n == 6: spin_check(a, "fs", vFLG, fa_load())
                if n + 3 < 10:
                    g = groups(g1_dma(n+3)); gs = g[:4]; carry = g[4:]
                if n == 5: gs = [[(fa_load(), "fs")]] + gs
                if n == opt.f1_at - 1: gs = [[(dbg_load(), "dbg")]] + gs
                if n: a.stamp(f"g{n}")
            else:
                if (n, ks) == (9, 0): a.waitvm("h", "lgkmcnt(0)")
                else: a("s_waitcnt lgkmcnt(0)")
                if (n, ks) == (9, 1): a.stamp("g9")
                if carry: gs = carry; carry = []
            if (n, ks) == (7, 1):
                gs = groups(h_loads() + [f"v_add_u32 v{vHA}, {L_CV}, v{vT16}"])
            if (n, ks) == (8, 0):
                gs = groups([(f"buffer_load_dwordx2 {vr(STT+2*rt,2)}, v176, {srd('WS')}, 0 offen offset:{128*rt} {LD}", "st") for rt in range(4)] + [(fa_load(), "fk")]
                            + ([(f"buffer_load_dword v{vPF}, v179, {srd('W2')}, 0 offen offset:{128*e}", "touch") for e in range(2)] if opt.touch else []))
            if (n, ks) == (7, 0): late += fk_addr()
            if (n, ks) == (9, 0): late += h_fill(0, 180) + h_fill(1, 228)[:8]
            if (n, ks) == (9, 1): late += h_fill(1, 228)[8:] + h_fill(2, 180) + [f"ds_write_b128 v177, {vr(CSR+4*tt,4)} offset:{64*tt}" for tt in range(2)]; gs = groups(w2_dma(0))
            mf = []; first = (n, ks) == (0, 0)
            for t in range(4):
                if t < 2:
                    c = vr(CSR + 4*t, 4)
                    mf.append(f"v_mfma_f32_16x16x32_bf16 {c}, {vr(AF+16*ks+4*t,4)}, {vr(ONES,4)}, {'0' if first else c}")
                for rt in range(4):
                    c = vr(ACC1 + 16*rt + 4*t, 4)
                    mf.append(f"v_mfma_f32_16x16x32_bf16 {c}, {vr(AF+16*ks+4*t,4)}, {vr(BF+16*ks+4*rt,4)}, {'0' if first else c}")
            timed = {}
            for gi, g in enumerate(gs): timed.setdefault(gi*17//len(gs), []).extend(g)
            left = weave2(a, mf, (reads(*nxt) if nxt else []) + late, timed)
            for it in left: a.emit(it)

def silu(a):
    a(f"""s_waitcnt lgkmcnt(0)
s_barrier""")
    a.stamp("silu")
    for tt in range(2): a(f"ds_read_b128 {vr(CSR+8+4*tt,4)}, v178 offset:{64*tt}")
    a(f"""s_lshr_b32 s63, {sW}, 1
s_lshl_b32 s3, s63, 2
s_lshl_b32 s62, {sRB}, 3
s_add_u32 s3, s3, s62
s_mul_i32 s3, s3, 56
s_lshl_b32 s62, {sG}, 2
s_add_u32 s3, s3, s62
s_and_b32 s62, {sW}, 1
s_lshl_b32 s62, s62, 1
s_add_u32 s3, s3, s62
s_add_u32 s3, s3, s63
s_lshl_b32 s3, s3, 10
s_add_u32 s64, s3, {WS_H}
s_xor_b32 s65, s64, 1024
s_mov_b32 s68, 0""")
    a.waitvm("fk")
    a(f"v_cmp_ne_u32 vcc, 1, v{vFLG}\ns_nop 0\ns_cbranch_vccnz L_uskip")
    for it in u_loads("?u"): a.emit(it)
    a("s_mov_b32 s68, 1\nL_uskip:")
    NL, Z, OUT = 84, 92, 100
    for rt in range(4): a(f"v_mul_f32 v{NL+2*rt}, {hex(f32bits(-1.4426950408889634))}, v{STT+2*rt+1}")
    extra = {}
    g = groups(w2_dma(1)) + groups(w2_dma(2))
    for gi, x in enumerate(g): extra.setdefault(gi*16//len(g), []).extend(x)
    extra.setdefault(7, []).append("s_waitcnt lgkmcnt(0)")
    idx = 0
    for p in range(2):
        for rt in range(4):
            st = STT + 2*rt; o = OUT + 4*(rt & 1)
            for e in range(2):
                t = 2*p + e
                c = ACC1 + 16*rt + 4*t; zz = Z + 4*e
                for h in range(2):
                    a(f"v_pk_fma_f32 {vr(c+2*h,2)}, {vr(CSR+4*t+2*h,2)}, {vr(st,2)}, {vr(c+2*h,2)} op_sel_hi:[1,0,1] neg_lo:[0,1,0] neg_hi:[0,1,0]")
                for h in range(2):
                    a(f"v_pk_mul_f32 {vr(c+2*h,2)}, {vr(c+2*h,2)}, {vr(NL+2*rt,2)} op_sel_hi:[1,0]")
                for i in range(4): a(f"v_exp_f32 v{zz+i}, v{c+i}")
                for h in range(2):
                    a(f"v_pk_add_f32 {vr(zz+2*h,2)}, {vr(zz+2*h,2)}, 1.0 op_sel_hi:[1,0]")
                for i in range(4): a(f"v_rcp_f32 v{zz+i}, v{zz+i}")
                for it in extra.get(idx, []): a.emit(it)
                for h in range(2):
                    a(f"v_pk_mul_f32 {vr(c+2*h,2)}, {vr(c+2*h,2)}, {vr(zz+2*h,2)}")
                for h in range(2):
                    a(f"v_cvt_pk_bf16_f32 v{o+2*e+h}, v{c+2*h}, v{c+2*h+1}")
                idx += 1
            a.vm(f"buffer_store_dwordx4 {vr(o,4)}, v{vL16}, {srd('WS')}, s{64+p} offen {ST}", "hst")
            if rt < 3: a(f"s_add_u32 s{64+p}, s{64+p}, {56*1024}")
    a(f"""s_lshl_b32 s3, {sRB}, 1
s_add_u32 s3, s3, {sHF}
s_lshl_b32 s3, s3, 7
s_mul_i32 s62, {sHF}, 7
s_sub_u32 s62, {sG}, s62
s_add_u32 s3, s3, s62
s_add_u32 s67, s3, {F2}
v_mov_b32 v{vF2}, v{vFL}""")

cT, cS, cT2, cS2, cP, cY, cE, cSH = 4, 5, 6, 7, 8, 9, 10, 11
TD, CACC, CX, TF, SF = 12, 20, 52, 84, 148
def conv_setup(a):
    t = 228
    a(f"""v_and_b32 v{t}, 15, v1
v_lshrrev_b32 v{t+1}, 4, v1
v_sub_u32 v{t+2}, 15, v{t}
v_and_b32 v{cT2}, 3, v{t+2}
v_mul_u32_u24 v{cT2}, {CV_SC}, v{cT2}
v_lshrrev_b32 v{t+3}, 2, v{t+2}
v_lshlrev_b32 v{t+3}, 3, v{t+3}
v_sub_u32 v{cT2}, v{cT2}, v{t+3}
v_lshl_add_u32 v{cT2}, v{t+1}, 4, v{cT2}
v_lshlrev_b32 v{cS2}, 5, v{t}
v_sub_u32 v{cS2}, {CV_U + 4064 - 3584 - 32}, v{cS2}
v_lshl_add_u32 v{cS2}, v{t+1}, 4, v{cS2}
s_and_b32 s64, {sW}, 1
s_lshr_b32 s65, {sW}, 1
s_mul_i32 s3, s64, {CV_CH}
s_mul_i32 s62, s65, 320
s_add_u32 s3, s3, s62
s_add_u32 s3, s3, {L_CV + 32}
v_add_u32 v{cT}, s3, v{cT2}
v_add_u32 v{cS}, s3, v{cS2}
s_lshl_b32 s3, s64, 8
s_add_u32 s3, s3, {L_CV + 2*CV_CH + 32}
v_add_u32 v{cT2}, s3, v{cT2}
v_add_u32 v{cS2}, s3, v{cS2}
s_lshl_b32 s3, s64, 15
v_add_u32 v{cP}, s3, v{vL16}
v_and_b32 v{cY}, 1, v{t+1}
v_lshlrev_b32 v{cY}, 9, v{cY}
v_lshl_add_u32 v{cY}, v{t}, 5, v{cY}
v_lshrrev_b32 v{t+3}, 1, v{t+1}
v_lshl_add_u32 v{cY}, v{t+3}, 4, v{cY}
v_lshlrev_b32 v{t+3}, 3, v{t+1}
v_sub_u32 v{cE}, v{t+2}, v{t+3}
v_and_b32 v{cSH}, 1, v{cE}
v_lshlrev_b32 v{cSH}, 4, v{cSH}
v_ashrrev_i32 v{cE}, 1, v{cE}
s_cmp_eq_u32 {sW}, 3
s_cselect_b32 s62, 64, 0
v_add_u32 v{cE}, s62, v{cE}
v_lshlrev_b32 v{vDV}, v{cSH}, v{vDV}""")
    for i in range(4):
        a(f"v_cmp_eq_u32 vcc, {i}, v{cE}\ns_nop 1\nv_cndmask_b32 v{TD+i}, 0, v{vDV}, vcc")
    a(f"""s_add_u32 s69, s69, {WS_YT}
v_min_u32 v{t}, 6, v1
s_lshl_b32 s3, {sRB2}, 1
s_add_u32 s3, s3, {sHF}
s_lshl_b32 s3, s3, 7
s_add_u32 s3, s3, {F2}
v_add_u32 v{t}, s3, v{t}""")

def pgap(j): return GAP[j >> 2] + 1024*(j & 3)
def conv_path(a, kind):
    full = [(i, i2, CACC + 4*(i+i2)) for i in range(7, -1, -1) for i2 in range(8 - i)]
    its = []
    if kind == "P0":
        for r in range(5):
            mf = ([("D", j, CACC + 4*j) for j in range(8)] if r == 0 else []) + full
            its.append(dict(mf=mf, vT=cT, vS=cS, r=r))
    else:
        for r in range(3): its.append(dict(mf=list(full), vT=cT, vS=cS, r=r))
        tiles = [0, 1, 6, 7] if kind == "P10" else [2, 3, 4, 5]
        half = [(i, j - i, CX + 4*s) for i in range(7, -1, -1) for s, j in enumerate(tiles) if j - i >= 0]
        for r in range(4):
            mf = ([("D", j, CX + 4*s) for s, j in enumerate(tiles)] if r == 0 else []) + half
            its.append(dict(mf=mf, vT=cT2, vS=cS2, r=r))
    def rds(n):
        it = its[n]; b = 32*(n & 1); out = []; seen = set()
        for (i, i2, _) in it["mf"]:
            if i != "D" and ("T", i) not in seen:
                seen.add(("T", i))
                for h in range(2): out.append((f"ds_read_b64 {vr(TF+b+4*i+2*h,2)}, v{it['vT']} offset:{512*i+64*it['r']+8*h}", (n, "T", i)))
            if ("S", i2) not in seen:
                seen.add(("S", i2))
                out.append((f"ds_read_b128 {vr(SF+b+4*i2,4)}, v{it['vS']} offset:{3584-512*i2+64*it['r']}", (n, "S", i2)))
        return out
    now = [0]; lq = []; AGE = 5
    def lds(x, tg): a(x); lq.append((tg, now[0]))
    def wait_l(tags):
        idx = [i for i, (t, _) in enumerate(lq) if t in tags]
        if not idx: return
        m = max(idx + [i for i, (t, tm) in enumerate(lq) if tm <= now[0] - AGE])
        m = max(m, len(lq) - 1 - 15)
        a(f"s_waitcnt lgkmcnt({len(lq) - 1 - m})"); del lq[:m+1]
    total = sum(len(it["mf"]) for it in its)
    side = {}
    def at(k, items): side.setdefault(k, []).extend(items)
    LW = "LWAIT"
    def dma_at(k, u):
        at(k, [LW])
        for gi, g in enumerate(groups(w2_dma(u))): at(k + 5*gi, g)
    at(4, [("WAITVM", "w2_0")] + w2_tr(0)); dma_at(16, 3)
    at(34, [("WAITVM", "w2_2")] + w2_tr(1)); dma_at(44, 4)
    at(56, w2_tr(2)); dma_at(70, 5)
    at(82, [("WAITVM", "w2_3")] + w2_tr(3)); dma_at(94, 6)
    if kind == "P0":
        at(118, [("WAITVM", "w2_4")] + w2_tr(4))
        at(132, [("WAITVM", "w2_5")] + w2_tr(5))
        at(166, [("WAITVM", "w2_6")] + w2_tr(6))
        at(152, [f"ds_read_b128 {vr(CX+4*j,4)}, v{cP} offset:{pgap(j)}" for j in range(8)])
    else:
        at(100, [("WAITVM", "w2_4")] + w2_tr(4))
        at(115, [f"ds_write_b128 v{cP}, {vr(CACC+4*j,4)} offset:{pgap(j)}" for j in range(8)])
        at(132, [("WAITVM", "w2_5")] + w2_tr(5))
        at(166, [("WAITVM", "w2_6")] + w2_tr(6))
    at(total - 36, [f"v_mov_b32 v{vFA}, v228", (fa_load(), "f2")])
    B3 = 148
    pend = rds(0); sq = []
    for _ in range(12):
        x, tg = pend.pop(0); lds(x, tg)
    init = set(); k = 0
    for n, it in enumerate(its):
        if n + 1 < len(its): pend += rds(n+1)
        b = 32*(n & 1)
        for m, (i, i2, acc) in enumerate(it["mf"]):
            if k == opt.hflag_at:
                a.waitvm("hst"); a("s_barrier"); flag_store(a, "s67", vF2)
            if k == B3:
                assert not any(isinstance(x, str) and x.startswith("ds_write") for x in sq)
                wait_l({"side"}); a("s_barrier")
            a.stamp(f"c{k}")
            need = {(n, "T", i), (n, "S", i2)}
            while any(tg in need for _, tg in pend):
                x, tg = pend.pop(0); lds(x, tg)
            wait_l(need)
            A = vr(TD, 4) if i == "D" else vr(TF+b+4*i, 4)
            c = vr(acc, 4)
            a(f"v_mfma_f32_16x16x32_bf16 {c}, {A}, {vr(SF+b+4*i2,4)}, {c if acc in init else '0'}")
            init.add(acc); now[0] += 1; k += 1
            sq += side.get(k, [])
            remain = len(it["mf"]) - m - 1
            for slot in range(2):
                urgent = len(pend) > 2*max(0, remain - 5) - slot or any(tg[0] == n for _, tg in pend)
                if pend and (urgent or not sq or slot == 0 and len(pend) > max(0, remain - 5)):
                    x, tg = pend.pop(0); lds(x, tg)
                elif sq:
                    x = sq.pop(0)
                    if x == LW: wait_l({"side"})
                    elif isinstance(x, str) and x.startswith("ds_"): lds(x, "side")
                    else: a.emit(x)
    assert not pend and not sq, (kind, pend, sq)
    a.stamp("cve")
    def fin(accs, parts, o, off):
        for e in range(2):
            for h in range(2): a(f"v_pk_add_f32 {vr(accs[e]+2*h,2)}, {vr(accs[e]+2*h,2)}, {vr(parts[e]+2*h,2)}")
            for h in range(2): a(f"v_cvt_pk_bf16_f32 v{o+2*e+h}, v{accs[e]+2*h}, v{accs[e]+2*h+1}")
        a(f"s_nop 1\nv_permlane16_swap_b32 v{o}, v{o+2}\nv_permlane16_swap_b32 v{o+1}, v{o+3}")
        a.vm(f"buffer_store_dwordx4 {vr(o,4)}, v{cY}, {srd('WS')}, s69 offen offset:{off} {ST}", "?yst")
    if kind == "P0":
        a("s_waitcnt lgkmcnt(0)\ns_barrier")
        for p in range(4):
            fin([CACC+8*p, CACC+8*p+4], [CX+8*p, CX+8*p+4], TF + 4*p, 1024*p)
    else:
        a(f"s_lshl_b32 s3, s64, 11\ns_add_u32 s3, s3, {GAP[4] + 2048}\nv_add_u32 v{cP}, s3, v{vL16}\nv_xor_b32 v{cE}, 2048, v{cP}\ns_nop 2\ns_cmp_eq_u32 s64, 0\ns_cbranch_scc0 LC_{kind}_1")
        for hh in range(2):
            if hh: a(f"LC_{kind}_1:")
            keep, send = 2*hh, 2*(1-hh)
            for j in range(2): a(f"ds_write_b128 v{cP}, {vr(CX+4*(send+j),4)} offset:{1024*j}")
            a("s_waitcnt lgkmcnt(0)\ns_barrier")
            for j in range(2): a(f"ds_read_b128 {vr(CACC+4*j,4)}, v{cE} offset:{1024*j}")
            a("s_waitcnt lgkmcnt(0)")
            fin([CX+4*keep, CX+4*keep+4], [CACC, CACC+4], TF, 512*tiles[keep])
            if hh == 0: a("s_branch L_g2")

def conv(a):
    conv_setup(a)
    a(f"s_cmp_eq_u32 s68, 0\ns_cbranch_scc1 LS_fk")
    a.waitvm("?u")
    a("LR_fk:")
    a.ool.append(spin_body("fk", vFLG, fa_load(), 4, "\n".join(x for x, _ in u_loads("u")) + "\ns_waitcnt vmcnt(0)"))
    for c in range(3): a(f"ds_write_b128 v{vHA}, {vr(UR+4*c,4)} offset:{c*CV_CH + CV_U}")
    a("s_waitcnt lgkmcnt(0)\ns_barrier")
    a.stamp("cv0")
    a(f"s_cmp_eq_u32 s65, 0\ns_cbranch_scc1 LC_P0\ns_bitcmp1_b32 {sSLOT}, 0\ns_cbranch_scc1 LC_P11")
    q0 = list(a.q)
    for kind in ("P10", "P11", "P0"):
        a.q = list(q0)
        a(f"LC_{kind}:")
        conv_path(a, kind)
        if kind != "P0": a("s_branch L_g2")
    a("L_g2:")

def gemm2(a):
    HB, ACC, YR, STR, PB, PR = 140, 20, 100, 112, 116, 176
    vO, vYG, vYL, vPW, vTR, vYL2, vXL, vSA, vPR, vFW, vL8 = 4, 7, 8, 9, 10, 11, 12, 13, 14, 15, 16
    NR = 28
    a.stamp("g2s")
    a(f"""s_mul_i32 s63, {sHF}, 28
s_mul_i32 s3, {sW}, 7
s_add_u32 s63, s63, s3
s_lshl_b32 s60, {sRB2}, 3
s_lshl_b32 s61, {sHF}, 2
s_add_u32 s61, s61, s60
s_xor_b32 s60, s61, 4""")
    for i in range(4):
        a(f"""s_add_u32 s3, {sW}, {i+1}
s_and_b32 s3, s3, 3
s_add_u32 s62, s60, s3
s_mul_i32 s62, s62, 56
s_add_u32 s62, s62, s63
s_lshl_b32 s62, s62, 10
s_add_u32 s{64+i}, s62, {WS_H}
s_mul_i32 s3, s3, 3
s_add_u32 s3, s3, {i}
s_mul_i32 s{56+i}, s3, 5120""")
    a(f"""s_sub_u32 s68, s61, s60
s_mul_i32 s68, s68, {56*1024}
s_sub_u32 s68, s68, 4096""")
    a.waitvm("f2")
    spin_check(a, "f2", vFLG, fa_load())
    a.stamp("f2ok")
    seq = [(p, i, T) for p in range(2) for i in range(4) for T in range(7)]
    def hload(k):
        p, i, T = seq[k]; r = []
        sr = f"s{64+i}"
        if T == 4: r.append(f"s_add_u32 {sr}, {sr}, 4096")
        if T == 0 and p == 1: r.append(f"s_add_u32 {sr}, {sr}, s68")
        r.append((f"buffer_load_dwordx4 {ar(HB+4*(k%NR),4)}, v{vL16}, {srd('WS')}, {sr} offen offset:{1024*(T&3)} {LD}", f"H{k}"))
        return r
    PRE = opt.depth
    for k in range(PRE):
        for it in hload(k): a.emit(it)
    t = 100
    a(f"""s_add_u32 s3, s61, {sW}
s_lshl_b32 s3, s3, 4
v_and_b32 v{t}, 15, v1
v_add_u32 v{vSA}, s3, v{t}
v_lshlrev_b32 v{vSA}, 3, v{vSA}
v_add_u32 v{vSA}, {WS_ST}, v{vSA}
s_mul_i32 s3, s3, 1280
s_mul_i32 s62, {sCG}, 160
s_add_u32 s3, s3, s62""")
    for i in range(3):
        a(f"""v_add_u32 v{t+1}, {64*i}, v1
v_mul_u32_u24 v{t+2}, 6554, v{t+1}
v_lshrrev_b32 v{t+2}, 16, v{t+2}
v_mul_u32_u24 v{t+2}, {1280-160}, v{t+2}
v_lshl_add_u32 v{t+1}, v{t+1}, 4, v{t+2}
v_add_u32 v{vO+i}, s3, v{t+1}""")
    a(f"""v_and_b32 v{t+1}, 32, v1
v_lshlrev_b32 v{t+1}, 26, v{t+1}
v_or_b32 v{vO+2}, v{vO+2}, v{t+1}
v_lshrrev_b32 v{t+1}, 4, v1
v_mul_u32_u24 v{t}, 160, v{t}
v_lshl_add_u32 v{t}, v{t+1}, 3, v{t}
s_mul_i32 s74, {sW}, 3072
s_add_u32 s74, s74, {L_XS}
v_add_u32 v{vXL}, s74, v{t}
s_lshl_b32 s3, {sW}, 5
s_add_u32 s3, s3, {L_Y}
s_sub_u32 s3, s3, {sW2M}
v_add_u32 v{vTR}, s3, v{vW2R}
v_lshrrev_b32 v{t+4}, 3, v0
v_and_b32 v{t+5}, 7, v0
v_lshlrev_b32 v{t+5}, 4, v{t+5}
v_lshl_add_u32 v{vYG}, v{t+4}, 12, v{t+5}
v_mul_u32_u24 v{t+4}, 160, v{t+4}
v_add3_u32 v{vYL}, v{t+4}, v{t+5}, 0
v_add_u32 v{vYL}, {L_Y}, v{vYL}
s_mul_i32 s3, {sCG}, 80
s_lshl_b32 s3, s3, 12
s_lshl_b32 s62, s61, 5
s_add_u32 s3, s3, s62
s_add_u32 s3, s3, {WS_YT}
v_add_u32 v{vYG}, s3, v{vYG}
s_cmp_ge_u32 {sW}, 2
s_cselect_b32 s73, 32, 64
s_mul_i32 s3, s73, 160
s_lshl_b32 s73, s73, 12
v_add_u32 v{vYL2}, s3, v{vYL}
s_lshl_b32 s72, {sXCD}, 7
s_add_u32 s72, s72, {sSLOT}
s_add_u32 s72, s72, {F3}
s_mov_b32 s63, {32*4096}
s_mul_i32 s3, {sW}, {3*5120}
v_add_u32 v{vPR}, s3, v{vL16}
v_lshlrev_b32 v{vL8}, 3, v1
v_min_u32 v{vFW}, 1, v1
v_lshlrev_b32 v{vFW}, 31, v{vFW}
s_lshl_b32 s3, s2, 2
s_add_u32 s3, s3, {sW}
s_mul_i32 s70, s3, 3072
s_add_u32 s70, s70, {WS_PM}
s_xor_b32 s62, s3, 16
s_mul_i32 s69, s62, 3072
s_add_u32 s69, s69, {WS_PM}
s_lshr_b32 s60, s62, 4
s_lshl_b32 s60, s60, 7
s_and_b32 s62, s62, 15
s_add_u32 s60, s60, s62
s_add_u32 s71, s60, {F4}
s_xor_b32 s60, s71, 128
v_and_b32 v{vFA}, 31, v1
s_lshl_b32 s3, {sCG}, 7
s_add_u32 s3, s3, {F3}
v_add_u32 v{vFA}, s3, v{vFA}
v_mov_b32 v17, s60""")
    assert (F4 >> 7) % 2 == 0
    def f4_load(): return f"buffer_load_ubyte v{vDBG}, v17, {srd('WS')}, 0 offen {LD}"
    def reduce_send():
        A = ACC + 60
        a("s_waitcnt lgkmcnt(0)")
        for n in range(10):
            for k in range(3): a(f"v_pk_add_f32 {vr(A+2*n,2)}, {vr(A+2*n,2)}, {vr(PB+20*k+2*n,2)}")
            a(f"v_cvt_pk_bf16_f32 v{PR+n}, v{A+2*n}, v{A+2*n+1}")
            if n in (3, 7): a.vm(f"buffer_store_dwordx4 {vr(PR+n-3,4)}, v{vL16}, {srd('WS')}, s69 offen offset:{256*(n-3)} {ST}", "pst")
        a.vm(f"buffer_store_dwordx2 {vr(PR+8,2)}, v{vL8}, {srd('WS')}, s69 offen offset:2048 {ST}", "pst")
    nxt = PRE
    for k, (p, i, T) in enumerate(seq):
        late = []
        if k == 6:
            a.waitvm("H0"); a("s_barrier"); flag_store(a, "s72")
        if k == 12:
            late.append((f"buffer_load_dwordx2 {vr(STR,2)}, v{vSA}, {srd('WS')}, 0 offen {LD}", "x"))
            for n in range(3):
                late += [f"s_add_u32 m0, s74, {1024*n}", "s_nop 0", (f"buffer_load_dwordx4 v{vO+n}, {srd('X')}, 0 offen lds", "x")]
        if k == 26:
            a("s_waitcnt lgkmcnt(0)\ns_barrier")
        if k in (26, 27, 28):
            late += [f"ds_read_b128 {vr(PB+20*(k-26)+4*n,4)}, v{vPR} offset:{L_PA + 5120*(k-26) + 1024*n}" for n in range(5)]
        if k == 30: reduce_send()
        if k == 34: late.append((fa_load(), "f3"))
        if k == 40:
            a.waitvm("pst"); flag_store(a, "s71", vFW)
        if k == 44:
            a.waitvm("f3")
            spin_check(a, "f3", vFLG, fa_load())
            a.stamp("f3ok")
            for kk, so in enumerate(("0", "s63", "s73")):
                late.append((f"buffer_load_dwordx4 {vr(YR+4*kk,4)}, v{vYG}, {srd('WS')}, {so} offen {LD}", "y"))
        if k == 50: late.append((f4_load(), "f4"))
        if T == 2 and i > 0:
            late.append(f"v_add_u32 v{vPW}, s{56+i-1}, v{vL16}")
            if p: late.append(f"v_add_u32 v{vPW}, {L_PB}, v{vPW}")
            for n in range(5): late.append(f"ds_write_b128 v{vPW}, {vr(ACC+20*(i-1)+4*n,4)} offset:{1024*n}")
        pre = []
        while nxt < min(len(seq), k + 1 + opt.depth):
            pre += hload(nxt); nxt += 1
        a.waitvm(f"H{k}")
        a.stamp(f"k{k}")
        mf = []
        for n in range(5):
            c = vr(ACC + 20*i + 4*n, 4)
            mf.append(f"v_mfma_f32_16x16x32_bf16 {c}, {ar((T*5+n)*4,4)}, {ar(HB+4*(k%NR),4)}, {c if T else '0'}")
        left = weave(a, mf, pre + late)
        for it in left: a.emit(it)
    XR, XF, XN = 20, 30, 50
    a.waitvm("f4")
    spin_check(a, "f4", vDBG, f4_load(), sleep=1)
    a.stamp("f4ok")
    a.vm(f"buffer_load_dwordx4 {vr(PR,4)}, v{vL16}, {srd('WS')}, s70 offen {LD}", "p")
    a.vm(f"buffer_load_dwordx4 {vr(PR+4,4)}, v{vL16}, {srd('WS')}, s70 offen offset:1024 {LD}", "p")
    a.vm(f"buffer_load_dwordx2 {vr(PR+8,2)}, v{vL8}, {srd('WS')}, s70 offen offset:2048 {LD}", "p")
    a(f"ds_write_b128 v{vYL}, {vr(YR,4)}\nds_write_b128 v{vYL}, {vr(YR+4,4)} offset:{32*160}\nds_write_b128 v{vYL2}, {vr(YR+8,4)}")
    for n in range(5): a(f"ds_read_b64 {vr(XR+2*n,2)}, v{vXL} offset:{32*n}")
    a(f"v_add_u32 v{vPR}, {L_PB}, v{vPR}")
    a("s_waitcnt lgkmcnt(0)\ns_barrier")
    a.stamp("fin")
    A = ACC + 60
    for n in range(5): a(f"ds_read_b64_tr_b16 {vr(YR+2*n,2)}, v{vTR} offset:{2560*n}")
    for k in range(2):
        for n in range(5): a(f"ds_read_b128 {vr(PB+20*k+4*n,4)}, v{vPR} offset:{5120*k + 1024*n}")
    for n in range(10):
        tx = XF + 2*n
        a(f"""v_lshlrev_b32 v{tx}, 16, v{XR+n}
v_and_b32 v{tx+1}, 0xffff0000, v{XR+n}
v_pk_add_f32 {vr(XN+2*n,2)}, {vr(tx,2)}, {vr(STR,2)} op_sel_hi:[1,0] neg_lo:[0,1] neg_hi:[0,1]
v_pk_mul_f32 {vr(XN+2*n,2)}, {vr(XN+2*n,2)}, {vr(STR,2)} op_sel:[0,1] op_sel_hi:[1,1]""")
        if n == 2:
            a("s_waitcnt lgkmcnt(5)")
            for nn in range(5): a(f"ds_read_b128 {vr(PB+40+4*nn,4)}, v{vPR} offset:{10240 + 1024*nn}")
    a(f"s_mov_b32 s62, {hex(f32bits(-0.6931471805599453))}\nv_add_u32 v17, s74, v{vL16}")
    for n in range(10):
        ty = 70 + 2*(n & 1)
        a(f"""v_lshlrev_b32 v{ty}, 16, v{YR+n}
v_and_b32 v{ty+1}, 0xffff0000, v{YR+n}
v_pk_fma_f32 {vr(XF+2*n,2)}, {vr(XN+2*n,2)}, {vr(ty,2)}, {vr(XF+2*n,2)}""")
    a("s_waitcnt lgkmcnt(0)")
    for n in range(10):
        for k in range(3): a(f"v_pk_add_f32 {vr(A+2*n,2)}, {vr(A+2*n,2)}, {vr(PB+20*k+2*n,2)}")
        a(f"v_pk_fma_f32 {vr(A+2*n,2)}, {vr(A+2*n,2)}, s[62:63], {vr(XF+2*n,2)} op_sel_hi:[1,0,1]")
    a.waitvm("p")
    for n in range(10):
        ty = 70 + 2*(n & 1)
        a(f"""v_lshlrev_b32 v{ty}, 16, v{PR+n}
v_and_b32 v{ty+1}, 0xffff0000, v{PR+n}
v_pk_fma_f32 {vr(A+2*n,2)}, {vr(ty,2)}, s[62:63], {vr(A+2*n,2)} op_sel_hi:[1,0,1]
v_cvt_pk_bf16_f32 v{XR+n}, v{A+2*n}, v{A+2*n+1}""")
        if n & 1: a(f"ds_write_b64 v{vXL}, {vr(XR+n-1,2)} offset:{32*(n>>1)}")
    a("s_waitcnt lgkmcnt(0)")
    for n in range(3): a(f"ds_read_b128 {vr(XF+2+4*n,4)}, v17 offset:{1024*n}")
    for n in range(3):
        a(f"s_waitcnt lgkmcnt({2-n})")
        a.vm(f"buffer_store_dwordx4 {vr(XF+2+4*n,4)}, v{vO+n}, {srd('OUT')}, 0 offen", "out")

def role_A(a):
    OS = 1040
    SLOT = 34*OS
    L_SH = 3*SLOT
    vD, vH, vR, vS, vG = 4, 8, 9, 10, 11
    KR, VR, WR = 24, 46, 62
    KF, WF, T, O = 70, 114, 130, 168
    a("L_A:")
    srd_fix(a, ["K", "V", "SH"])
    a(f"""s_lshl_b32 s64, {sW}, 5
s_add_u32 s64, s64, s68
v_lshrrev_b32 v20, 3, v1
v_and_b32 v21, 7, v1
v_lshlrev_b32 v21, 4, v21
s_mul_i32 s65, {sHF}, 640
v_add_u32 v22, s64, v20
v_mul_u32_u24 v22, 1280, v22
v_add3_u32 v{vD}, v22, v21, s65
s_cmp_eq_u32 {sW}, 0
s_cselect_b32 s66, 5, 8
s_cselect_b32 s68, 0, {33*OS}
s_cmp_eq_u32 {sRB}, 0
s_cselect_b32 s66, 8, s66
v_cmp_le_u32 vcc, s66, v20
v_subrev_u32 v{vH}, {8*1280}, v{vD}
v_mov_b32 v22, {OOB}
v_cndmask_b32 v{vH}, v22, v{vH}, vcc
v_add_u32 v{vD+1}, {8*1280 - OS}, v{vD}
v_add_u32 v{vD+2}, {2*(8*1280 - OS)}, v{vD}
v_add_u32 v{vD+3}, {3*(8*1280 - OS)}, v{vD}
s_mul_i32 s67, {sW}, {4*OS}
v_lshlrev_b32 v{vT16}, 4, v0
s_lshl_b32 s3, {sW}, 10
s_add_u32 m0, s3, {L_SH}
s_mul_i32 s3, {sHF}, 2560
s_waitcnt lgkmcnt(0)""")
    stats_loads(a)
    a.vm(f"buffer_load_dwordx4 v{vT16}, {srd('SH')}, s3 offen lds", "d0")
    def dma(n):
        base = (n % 3)*SLOT
        r = [f"s_add_u32 m0, s68, {base}", f"s_mov_b32 s64, {128*n}", (f"buffer_load_dwordx4 v{vH}, {srd('K')}, s64 offen lds", f"d{n}")]
        for kind, o in (("K", OS), ("V", 17*OS)):
            r += [f"s_add_u32 m0, s67, {base + o}", "s_nop 0"]
            r += [(f"buffer_load_dwordx4 v{vD+i}, {srd(kind)}, s64 offen offset:{i*OS} {NT()} lds", f"d{n}") for i in range(4)]
        return r
    for it in dma(0): a.emit(it)
    common_setup(a)
    a(f"""v_and_b32 v20, 15, v1
v_xor_b32 v20, 15, v20
v_lshrrev_b32 v21, 4, v0
v_mul_u32_u24 v{vR}, {OS}, v20
v_lshl_add_u32 v{vR}, v21, 3, v{vR}
v_add_u32 v{vR+3}, {SLOT}, v{vR}
v_add_u32 v{vR+4}, {2*SLOT}, v{vR}
v_lshlrev_b32 v{vS}, 5, v21
v_add_u32 v{vS}, {L_SH}, v{vS}
v_lshlrev_b32 v20, 4, v20
v_lshlrev_b32 v{vG}, 14, v21
v_sub_u32 v{vG}, v{vG}, v20
s_mul_i32 s69, {sHF}, 5
s_lshl_b32 s70, s69, 18
s_lshl_b32 s3, {sRB}, 8
s_sub_u32 s70, s70, s3
s_add_u32 s70, s70, {WS_KVT + 3840 + 240}
v_add_u32 v{vG}, s70, v{vG}
s_lshl_b32 s72, s69, 7
s_add_u32 s72, s72, {sRB}
s_add_u32 s65, s72, {FK}
v_lshlrev_b32 v20, 7, v0
v_cmp_gt_u32 vcc, 5, v0
v_mov_b32 v21, {OOB}
s_nop 0
v_cndmask_b32 v{vF2}, v21, v20, vcc""")
    stats_compute(a, 24)
    for it in dma(1): a.emit(it)
    def lo(d, s): return f"v_lshlrev_b32 v{d}, 16, v{s}"
    def hi(d, s): return f"v_and_b32 v{d}, 0xffff0000, v{s}"
    def vRn(n): return (vR, vR+3, vR+4)[n % 3]
    def rdK(n):
        r = [f"ds_read_b128 {vr(WR+4*h,4)}, v{vS} offset:{512*n + 16*h}" for h in range(2)]
        r += [f"ds_read_b64 {vr(KR+2*i,2)}, v{vRn(n)} offset:{128*(5+i) if i < 3 else OS + 128*(i-3)}" for i in range(11)]
        return r
    NT_ = opt.ntile
    a.waitvm("d0"); a("s_barrier"); a.stamp("a_it0")
    a("\n".join(rdK(0)))
    for n in range(NT_):
        body = ["s_waitcnt lgkmcnt(0)"]
        body += [f"ds_read_b64 {vr(VR+2*i,2)}, v{vRn(n)} offset:{17*OS + 128*i}" for i in range(8)]
        for c in range(4):
            for jj in range(4): body.append((hi if jj & 1 else lo)(WF + jj*4 + c, WR + 2*c + (jj >> 1)))
        for i in range(11):
            for p in range(2): body += [lo(KF + 4*i + 2*p, KR + 2*i + p), hi(KF + 4*i + 2*p + 1, KR + 2*i + p)]
        for i in range(8):
            for jj in range(4):
                for p in range(2):
                    r = T + 4*i + 2*p
                    if jj == 0: body.append(f"v_pk_mul_f32 {vr(r,2)}, {vr(KF+4*(i+3)+2*p,2)}, {vr(WF+2*p,2)}")
                    else: body.append(f"v_pk_fma_f32 {vr(r,2)}, {vr(KF+4*(i+3-jj)+2*p,2)}, {vr(WF+4*jj+2*p,2)}, {vr(r,2)}")
        g = groups(dma(n+2)) if n + 2 < NT_ else []
        if n == 0: g = g[:-1] + [[(dbg_load(), "dbg")]] + g[-1:]
        step = len(body) // max(1, len(g))
        for bi, x in enumerate(body):
            if bi % step == 0 and g:
                for it in g.pop(0): a.emit(it)
            a(x)
        assert not g
        if n + 1 < NT_:
            a.waitvm(f"d{n+1}" if n != 1 else ("d2" if NT_ > 2 else "dbg"), "lgkmcnt(0)"); a("s_barrier")
            if n == 1:
                a.stamp("a_it2")
                spin_check(a, "dbgA", vDBG, dbg_load()); flag_store(a, "s71")
            a("\n".join(rdK(n+1)))
        else: a("s_waitcnt lgkmcnt(0)")
        for i in range(8):
            for p in range(2):
                r = T + 4*i + 2*p; tv = T + 32 + 2*p
                a(lo(tv, VR + 2*i + p)); a(hi(tv + 1, VR + 2*i + p)); a(f"v_pk_mul_f32 {vr(r,2)}, {vr(r,2)}, {vr(tv,2)}")
        for c in range(4):
            for q in range(4):
                a(f"v_cvt_pk_bf16_f32 v{O+4*c+q}, v{T+4*(7-2*q)+c}, v{T+4*(6-2*q)+c}")
            a(f"s_mov_b32 s70, {(n << 18) + 4096*c}")
            a.vm(f"buffer_store_dwordx4 {vr(O+4*c,4)}, v{vG}, {srd('WS')}, s70 offen {ST}", "st")
    a.stamp("a_end")
    ch_setup(a)
    for it in h_loads(): a.emit(it)
    w2_setup(a, 20)
    a.waitvm("st"); a("s_barrier")
    flag_store(a, "s65", vF2)
    a.stamp("a_flag")
    for u in range(3):
        for it in w2_dma(u): a.emit(it)
    h_zero(a, 24)
    a("\n".join(fk_addr()))
    a(f"v_add_u32 v{vHA}, {L_CV}, v{vT16}")
    a.waitvm("h")
    for c in range(3): a("\n".join(h_fill(c, 32 + 12*c)))
    a(f"s_mov_b32 s68, 0\ns_mov_b32 s67, 0\nv_mov_b32 v{vF2}, {OOB}")
    a.stamp("a_join")
    a("s_branch L_conv")

def build(path):
    a = K()
    name = NAME + "_kernel"
    a(header([f"; @launch grid=(256,1,1) block=(256,1,1) lds={LDS_TOTAL}"]))
    a(kernel_begin(name))
    prologue(a)
    g_start(a)
    gemm1(a)
    silu(a)
    a("L_conv:")
    a.stamp("conv")
    conv(a)
    gemm2(a)
    if opt.stamp:
        a("s_waitcnt vmcnt(0)"); a.stamp("end"); a("s_waitcnt lgkmcnt(0)")
        a(f"s_lshl_b32 s3, s2, 2\ns_add_u32 s3, s3, {sW}\ns_lshl_b32 s3, s3, 6\ns_add_u32 s3, s3, {WS_STAMP}\nv_mov_b32 v2, s3\ns_mov_b64 exec, 1")
        for i in range(13):
            a(f"v_mov_b32 v3, s{76+2*i}\nbuffer_store_dword v3, v2, {srd('WS')}, 0 offen offset:{4*i}")
        a(f"v_mov_b32 v3, 13\nbuffer_store_dword v3, v2, {srd('WS')}, 0 offen offset:60")
    a("L_end:\ns_endpgm")
    a.q = []
    role_A(a)
    a("\n".join(a.ool))
    a(f"L_pad:\n.fill (45056 - (L_pad - {name}))/4, 4, 0xbf810000")
    a(rodata()); a(kernel_desc(name, 512, 102, 256))
    open(path, "w").write(a.text())

if __name__ == "__main__":
    for x in sys.argv[2:]:
        k, v = x.split("="); setattr(opt, k, int(v))
    build(sys.argv[1])
```

```python
import sys, re
from asmlib import *
src, dst, idx, amp = sys.argv[1], sys.argv[2], int(sys.argv[3]), int(sys.argv[4])
mode = sys.argv[5] if len(sys.argv) > 5 else "max"
s = open(src).read()
name = NAME + "_kernel"
m = re.search(r"; @launch (grid=\S+ block=\S+ lds=\d+)", s)
s = s.replace(m.group(0), f"; @launch kernel={name} {m.group(1)}\n; @launch kernel=amp_kernel grid=(1,1,1) block=(64,1,1) lds=0")
acc = "v_max_i32 v5, v5, v3" if mode == "max" else "v_add_u32 v5, v5, v3"
sacc = "s_max_i32 s21, s21, s23" if mode == "max" else "s_add_u32 s21, s21, s23"
code = kernel_begin("amp_kernel") + f"""
s_cmp_ge_u32 s2, 1
s_cbranch_scc1 LZ_end
s_memrealtime s[30:31]
s_load_dwordx2 s[8:9], s[0:1], 88
s_mov_b32 s10, 0x1000000
s_mov_b32 s11, 0x20000
v_lshlrev_b32 v1, 6, v0
v_mov_b32 v4, 0
v_mov_b32 v5, {'0x80000000' if mode == 'max' else '0'}
s_mov_b32 s12, 0x580000
s_waitcnt lgkmcnt(0)
LZ_l:
buffer_load_dword v2, v1, s[8:11], s12 offen
buffer_load_dword v3, v1, s[8:11], s12 offen offset:{4*idx}
s_add_u32 s12, s12, 4096
s_waitcnt vmcnt(0)
v_subrev_u32 v2, s30, v2
v_subrev_u32 v3, s30, v3
v_min_i32 v4, v4, v2
{acc}
s_cmp_lt_u32 s12, 0x590000
s_cbranch_scc1 LZ_l
s_mov_b32 s20, 0
s_mov_b32 s21, {'0x80000000' if mode == 'max' else '0'}
s_mov_b32 s13, 0
LZ_r:
v_readlane_b32 s22, v4, s13
v_readlane_b32 s23, v5, s13
s_add_u32 s13, s13, 1
s_min_i32 s20, s20, s22
{sacc}
s_cmp_lt_u32 s13, 64
s_cbranch_scc1 LZ_r
{'' if mode == 'max' else 's_ashr_i32 s21, s21, 10'}
s_sub_u32 s21, s21, s20
s_min_u32 s21, s21, 10000
s_mul_i32 s21, s21, {amp}
s_add_u32 s21, s21, 2000
LZ_s:
s_memrealtime s[32:33]
s_waitcnt lgkmcnt(0)
s_sub_u32 s22, s32, s30
s_cmp_lt_u32 s22, s21
s_cbranch_scc1 LZ_s
LZ_end:
s_endpgm
"""
i = s.index('.section .rodata')
s = s[:i] + code + s[i:] + ".p2align 6\n" + kernel_desc("amp_kernel", 16, 48, 16)
open(dst, "w").write(s)
```
